```python
import torch

def _softmax(x, axis=-1):
    return torch.softmax(x, dim=axis)
def _gelu(x):
    return torch.nn.functional.gelu(x, approximate="tanh")
def _silu(x):
    return torch.nn.functional.silu(x)
def _sigmoid(x):
    return torch.sigmoid(x)
def _layernorm(x, axis=-1, eps=1e-5):
    m = x.mean(dim=axis, keepdim=True)
    v = x.var(dim=axis, keepdim=True, unbiased=False)
    return (x - m) / torch.sqrt(v + eps)
def _scatter_add(tgt, idx, src, axis=0):
    return tgt.clone().index_add_(axis, idx, src)
def _segment_sum(src, seg, n):
    out = torch.zeros((n,) + src.shape[1:], dtype=src.dtype)
    return out.index_add_(0, seg, src)
def _pad(x, pw):
    flat = tuple(v for pair in reversed(pw) for v in pair)
    return torch.nn.functional.pad(x, flat)

kernel_name = 'standalone__mha_block__prompt'

def setup_inputs():

    _w = (lambda a: (lambda t: t.to(torch.bfloat16) if t.is_floating_point() else t)(torch.as_tensor(a)))
    B, S, D, H = 1, 2048, 448, 16
    return {
        "x": _w((lambda *s: torch.randn(*s, dtype=torch.bfloat16) * 0.2)(B, S, D)),
        "wqkv": _w((lambda *s: torch.randn(*s, dtype=torch.bfloat16) * 0.2)(D, 3 * D)),
        "wo": _w((lambda *s: torch.randn(*s, dtype=torch.bfloat16) * 0.05)(D, D)),
    }

def reference(x, wqkv, wo):
    B, S, D = x.shape
    H = 16
    Dh = D // H
    qkv = (lambda x, *d: x.permute(*d))((x @ wqkv).reshape(B, S, 3, H, Dh), 2, 0, 3, 1, 4)
    q, k, v = qkv[0], qkv[1], qkv[2]
    scores = torch.einsum("bhqd,bhkd->bhqk", q, k) * (Dh ** -0.5)
    p = _softmax(scores, axis=-1)
    o = torch.einsum("bhqk,bhkd->bhqd", p, v)
    return (lambda x, *d: x.permute(*d))(o, 0, 2, 1, 3).reshape(B, S, D) @ wo
```

```python
class Asm:
    def __init__(self):
        self.lines = []
    def __call__(self, s):
        for l in s.strip("\n").split("\n"):
            self.lines.append("    " + l.strip())
    def label(self, name):
        self.lines.append(f"{name}:")
    def raw(self, s):
        self.lines.append(s)
    def comment(self, s):
        self.lines.append(f"    ; {s}")
    def text(self):
        return "\n".join(self.lines) + "\n"

def vr(b, n):
    return f"v[{b}:{b+n-1}]" if n > 1 else f"v{b}"
def ar(b, n):
    return f"a[{b}:{b+n-1}]" if n > 1 else f"a{b}"
def sr(b, n):
    return f"s[{b}:{b+n-1}]" if n > 1 else f"s{b}"

def kernel_header(name):
    return f""".globl {name}
.p2align 8
.type {name},@function
{name}:
"""

def kernel_desc(name, vgpr, accum, sgpr=102):
    return f""".p2align 6
.amdhsa_kernel {name}
  .amdhsa_next_free_vgpr {vgpr}
  .amdhsa_next_free_sgpr {sgpr}
  .amdhsa_accum_offset {accum}
  .amdhsa_group_segment_fixed_size 0
  .amdhsa_kernarg_size 48
  .amdhsa_user_sgpr_count 2
  .amdhsa_user_sgpr_kernarg_segment_ptr 1
  .amdhsa_system_sgpr_workgroup_id_x 1
.end_amdhsa_kernel
"""
```

```python
from asmlib import *
import struct, math

QF_BASE = 0
KV_BASE = 2 << 20
OF_BASE = 6 << 20
WS_SIZE = 8 << 20
X_BYTES = 2048 * 448 * 2
W_BYTES = 448 * 1344 * 2
WO_BYTES = 448 * 448 * 2
QSCALE = math.log2(math.e) / math.sqrt(28.0)
def f32bits(x): return struct.unpack("<I", struct.pack("<f", x))[0]

K1_SLOT = 28672
K1_LDS = 5 * K1_SLOT

def gen_k1(name="qkv_kernel"):
    a = Asm()
    a.raw(kernel_header(name))
    P = "K1"
    a(f"""
    s_cmp_ge_u32 s2, 256
    s_cbranch_scc1 {P}_end
    s_load_dwordx4 s[4:7], s[0:1], 0
    s_load_dwordx2 s[12:13], s[0:1], 40
    v_and_b32 v1, 63, v0
    v_lshrrev_b32 v2, 6, v0
    s_and_b32 s16, s2, 7
    s_lshl_b32 s16, s16, 5
    s_lshr_b32 s17, s2, 3
    s_add_u32 s16, s16, s17
    v_readfirstlane_b32 s19, v2
    s_waitcnt lgkmcnt(0)
    s_mov_b32 s8, s6
    s_mov_b32 s9, s7
    s_mov_b32 s6, {X_BYTES}
    s_mov_b32 s7, 0x00020000
    s_mov_b32 s10, {W_BYTES}
    s_mov_b32 s11, 0x00020000
    s_mov_b32 s14, {OF_BASE}
    s_mov_b32 s15, 0x00020000
    s_cmp_ge_u32 s16, 242
    s_cbranch_scc1 {P}_pads
    """)
    a(f"""
    s_mul_i32 s20, s16, 993
    s_lshr_b32 s20, s20, 16
    s_mul_i32 s21, s20, 66
    s_sub_u32 s21, s16, s21
    s_mul_i32 s17, s21, 171
    s_lshr_b32 s17, s17, 10
    s_mul_i32 s22, s17, 6
    s_sub_u32 s22, s21, s22
    s_lshr_b32 s23, s21, 2
    s_and_b32 s24, s21, 3
    s_cmp_eq_u32 s20, 3
    s_cselect_b32 s17, s23, s17
    s_cselect_b32 s22, s24, s22
    s_mul_i32 s18, s20, 6
    s_add_u32 s18, s18, s22
    """)
    a(f"""
    s_add_u32 s20, s17, s18
    s_mul_i32 s21, s20, 147
    s_lshr_b32 s21, s21, 10
    s_mul_i32 s21, s21, 7
    s_sub_u32 s20, s20, s21
    s_mul_i32 s24, s18, {96*896}
    s_mul_i32 s21, s19, {24*896}
    s_add_u32 s24, s24, s21
    s_lshl_b32 s25, s17, 8
    s_mul_i32 s21, s19, {16*2688}
    s_add_u32 s25, s25, s21
    s_mul_i32 s26, s19, 3072
    s_lshl_b32 s27, s19, 12
    s_add_u32 s27, s27, 12288
    """)
    a(f"""
    v_lshrrev_b32 v5, 3, v1
    v_and_b32 v6, 7, v1
    v_lshrrev_b32 v7, 1, v5
    v_xor_b32 v6, v6, v7
    s_and_b32 s21, s19, 1
    s_lshl_b32 s21, s21, 2
    v_xor_b32 v6, s21, v6
    v_mul_u32_u24 v5, 896, v5
    v_lshl_add_u32 v2, v6, 4, v5
    v_xor_b32 v6, 4, v6
    v_lshl_add_u32 v3, v6, 4, v5
    v_lshrrev_b32 v5, 4, v1
    v_and_b32 v6, 15, v1
    v_lshlrev_b32 v7, 2, v5
    v_xor_b32 v6, v6, v7
    v_mul_u32_u24 v5, 2688, v5
    v_lshl_add_u32 v4, v6, 4, v5
    """)
    def issue_chunk(i):
        slot = i % 5
        a(f"""
        s_lshl_b32 s21, s20, 7
        s_add_u32 s21, s21, s24
        s_mul_i32 s22, s20, {64*2688}
        s_add_u32 s22, s22, s25
        """)
        for jj in range(3):
            a(f"s_add_u32 m0, s26, {slot*K1_SLOT + jj*1024}")
            if jj: a(f"s_add_u32 s21, s21, {8*896}")
            else: a("s_nop 0")
            a(f"buffer_load_dwordx4 {'v3' if jj == 1 else 'v2'}, s[4:7], s21 offen lds")
        for qq in range(4):
            a(f"s_add_u32 m0, s27, {slot*K1_SLOT + qq*1024}")
            if qq: a(f"s_add_u32 s22, s22, {4*2688}")
            else: a("s_nop 0")
            a(f"buffer_load_dwordx4 v4, s[8:11], s22 offen lds")
        a(f"""
        s_add_u32 s20, s20, 1
        s_cmp_eq_u32 s20, 7
        s_cselect_b32 s20, 0, s20
        """)
    for i in range(5):
        issue_chunk(i)
    a(f"""
    v_and_b32 v10, 31, v1
    v_lshrrev_b32 v11, 5, v1
    v_lshrrev_b32 v12, 3, v10
    v_and_b32 v13, 7, v10
    v_lshrrev_b32 v14, 1, v13
    v_and_b32 v15, 1, v12
    v_lshl_or_b32 v14, v15, 2, v14
    v_xor_b32 v14, v14, v11
    v_lshlrev_b32 v12, 10, v12
    v_lshl_add_u32 v12, v13, 7, v12
    """)
    for ks in range(4):
        a(f"""
        v_xor_b32 v15, {2*ks}, v14
        v_lshl_add_u32 v{5+ks}, v15, 4, v12
        """)
    a(f"""
    v_bfe_u32 v10, v1, 4, 1
    v_bfe_u32 v12, v1, 2, 2
    v_bfe_u32 v13, v1, 1, 1
    v_lshl_add_u32 v13, v10, 1, v13
    s_lshl_b32 s21, s19, 2
    v_add_u32 v13, s21, v13
    v_lshlrev_b32 v14, 2, v12
    v_xor_b32 v13, v13, v14
    v_lshlrev_b32 v13, 4, v13
    v_lshl_add_u32 v13, v12, 8, v13
    v_lshl_add_u32 v13, v11, 11, v13
    v_and_b32 v14, 1, v1
    v_lshl_add_u32 v9, v14, 3, v13
    v_add_u32 v9, 12288, v9
    """)
    a(f"""
    s_cmp_ge_u32 s17, 7
    s_cbranch_scc1 {P}_vpath
    """)
    XF = 16; WF = 64; ACC = 80
    def mainloop(vorient):
        waits = [28, 21, 21, 21, 14, 7, 0]
        for i in range(7):
            slot = i % 5
            a(f"s_waitcnt vmcnt({waits[i]})")
            a("s_barrier")
            if 1 <= i <= 2:
                issue_chunk(i + 4)
            for ks in range(4):
                a(f"v_add_u32 v{10+ks}, {slot*K1_SLOT}, v{5+ks}")
            a(f"v_add_u32 v14, {slot*K1_SLOT}, v9")
            for ks in range(4):
                a(f"ds_read_b64_tr_b16 {vr(WF+4*ks,2)}, v14 offset:{ks*4096}")
                a(f"ds_read_b64_tr_b16 {vr(WF+4*ks+2,2)}, v14 offset:{ks*4096+1024}")
                for mt in range(3):
                    a(f"ds_read_b128 {vr(XF+(ks*3+mt)*4,4)}, v{10+ks} offset:{mt*4096}")
            for ks in range(4):
                a(f"s_waitcnt lgkmcnt({15-5*ks})")
                for mt in range(3):
                    acc = vr(ACC+16*mt, 16)
                    c = "0" if (i == 0 and ks == 0) else acc
                    xf = vr(XF+(ks*3+mt)*4, 4); wf = vr(WF+4*ks, 4)
                    if vorient:
                        a(f"v_mfma_f32_32x32x16_bf16 {acc}, {xf}, {wf}, {c}")
                    else:
                        a(f"v_mfma_f32_32x32x16_bf16 {acc}, {wf}, {xf}, {c}")
    mainloop(False)
    a(f"""
    s_lshl_b32 s21, s17, 2
    s_add_u32 s21, s21, s19
    s_cmp_ge_u32 s21, 14
    s_cselect_b32 s22, 14, 0
    s_cselect_b32 s23, {f32bits(1.0)}, {f32bits(QSCALE)}
    s_cselect_b32 s28, {KV_BASE}, {QF_BASE}
    s_cselect_b32 s29, 18, 17
    s_cselect_b32 s30, 12, 11
    s_sub_u32 s21, s21, s22
    s_lshl_b32 s21, s21, 3
    s_mul_i32 s31, s18, 3
    s_lshl_b32 s22, s31, s30
    s_add_u32 s28, s28, s22
    s_lshl_b32 s30, 1, s30
    v_lshrrev_b32 v11, 5, v1
    v_and_b32 v10, 31, v1
    v_lshlrev_b32 v10, 4, v10
    """)
    for g in range(4):
        a(f"""
        v_add_u32 v12, s21, v11
        v_add_u32 v12, {2*g}, v12
        v_mul_u32_u24 v13, 147, v12
        v_lshrrev_b32 v13, 10, v13
        v_mul_u32_u24 v14, 7, v13
        v_sub_u32 v12, v12, v14
        v_lshlrev_b32 v13, s29, v13
        v_add_u32 v13, v13, v10
        v_lshrrev_b32 v14, 2, v12
        v_lshl_add_u32 v13, v14, 10, v13
        v_and_b32 v14, 1, v12
        v_lshl_add_u32 v13, v14, 9, v13
        v_bfe_u32 v14, v12, 1, 1
        v_lshl_add_u32 v{5+g}, v14, 3, v13
        """)
    for mt in range(3):
        if mt:
            a(f"""
            s_add_u32 s31, s31, 1
            s_cmp_ge_u32 s31, 64
            s_cbranch_scc1 {P}_end
            s_add_u32 s28, s28, s30
            """)
        for r in range(16):
            a(f"v_mul_f32 v{ACC+16*mt+r}, s23, v{ACC+16*mt+r}")
        for r in range(8):
            a(f"v_cvt_pk_bf16_f32 v{XF+8*mt+r}, v{ACC+16*mt+2*r}, v{ACC+16*mt+2*r+1}")
        for g in range(4):
            a(f"buffer_store_dwordx2 {vr(XF+8*mt+2*g,2)}, v{5+g}, s[12:15], s28 offen")
    a(f"s_branch {P}_end")
    a.label(f"{P}_vpath")
    mainloop(True)
    a(f"""
    s_lshl_b32 s21, s17, 2
    s_add_u32 s21, s21, s19
    s_cmp_ge_u32 s21, 42
    s_cbranch_scc1 {P}_end
    s_sub_u32 s21, s21, 28
    s_lshl_b32 s21, s21, 5
    s_mul_i32 s31, s18, 3
    s_lshl_b32 s28, s31, 12
    s_add_u32 s28, s28, {KV_BASE + 2048}
    v_and_b32 v10, 31, v1
    v_add_u32 v10, s21, v10
    v_mul_u32_u24 v11, 293, v10
    v_lshrrev_b32 v11, 13, v11
    v_mul_u32_u24 v12, 28, v11
    v_sub_u32 v10, v10, v12
    v_lshlrev_b32 v11, 18, v11
    v_lshl_add_u32 v11, v10, 4, v11
    v_lshrrev_b32 v12, 5, v1
    v_lshl_add_u32 v5, v12, 9, v11
    """)
    for mt in range(3):
        if mt:
            a(f"""
            s_add_u32 s31, s31, 1
            s_cmp_ge_u32 s31, 64
            s_cbranch_scc1 {P}_end
            s_add_u32 s28, s28, 4096
            """)
        for r in range(8):
            a(f"v_cvt_pk_bf16_f32 v{XF+8*mt+r}, v{ACC+16*mt+2*r}, v{ACC+16*mt+2*r+1}")
        for f in range(2):
            a(f"buffer_store_dwordx4 {vr(XF+8*mt+4*f,4)}, v5, s[12:15], s28 offen offset:{f*1024}")
    a(f"s_branch {P}_end")
    a.label(f"{P}_pads")
    a(f"""
    s_sub_u32 s16, s16, 242
    s_lshl_b32 s16, s16, 8
    v_add_u32 v2, s16, v0
    v_mov_b32 v4, 0x3f803f80
    v_mov_b32 v5, 0x00003f80
    """)
    for i in range(10):
        a(f"""
        v_add_u32 v3, {3584*i}, v2
        v_lshrrev_b32 v6, 5, v3
        v_and_b32 v7, 31, v3
        v_lshlrev_b32 v6, 12, v6
        v_lshl_add_u32 v6, v7, 4, v6
        v_add_u32 v6, {KV_BASE + 1024 + 512 + 8}, v6
        buffer_store_dwordx2 v[4:5], v6, s[12:15], 0 offen
        """)
    a(f"""
    v_and_b32 v7, 3, v2
    v_cmp_eq_u32 vcc, 0, v7
    v_mov_b32 v8, 0
    s_nop 1
    v_cndmask_b32 v8, v8, v4, vcc
    v_mov_b32 v9, v8
    v_mov_b32 v10, v8
    v_mov_b32 v11, v8
    """)
    for i in range(5):
        a(f"""
        v_add_u32 v3, {3584*i}, v2
        v_lshrrev_b32 v6, 4, v3
        v_lshlrev_b32 v6, 12, v6
        v_bfe_u32 v7, v3, 2, 2
        v_lshl_add_u32 v6, v7, 9, v6
        v_and_b32 v7, 3, v3
        v_lshl_add_u32 v6, v7, 4, v6
        v_add_u32 v6, {KV_BASE + 2048 + 28*16}, v6
        buffer_store_dwordx4 v[8:11], v6, s[12:15], 0 offen
        """)
    a.label(f"{P}_end")
    a("s_endpgm")
    return a.text(), kernel_desc(name, 128, 128, 40), f"; @launch kernel={name} grid=(256,1,1) block=(256,1,1) lds={K1_LDS}"
```

```python
from asmlib import *
from k1 import QF_BASE, KV_BASE, OF_BASE, WS_SIZE

K2_LDS = 49152
Q0 = 8
S0 = 40
E0 = 72
P0 = 88; NP = 6
O0 = 136
KK = 200
T0 = 208
V_WA, V_WB, V_RC, V_WC, V_RD = 2, 3, 4, 5, 6

class Sched:
    def __init__(self, a):
        self.a = a
        self.n = 0
        self.t = 0
        self.mfree = 0
        self.done = {}
    def emit(self, s, cost=4, name=None):
        self.a(s)
        if name: self.done[name] = self.n
        self.n += 1
        self.t += cost
    def ready(self, deps):
        for nm, dist in deps:
            if nm not in self.done: return False
            if self.n - self.done[nm] - 1 < dist: return False
        return True

def qslot(t): return (t & 1) if t < 32 else (2 if t < 48 else 3)
def kslot(t): return (t >> 1) if t < 32 else (t - 32 if t < 48 else t - 48)
def oacc(qs): return O0 + 16 * [0, 1, 2, 0][qs]

def gen_k2(name="attn_kernel"):
    a = Asm()
    a.raw(kernel_header(name))
    P = "K2"
    a(f"""
    s_cmp_ge_u32 s2, 256
    s_cbranch_scc1 {P}_end
    s_load_dwordx2 s[4:5], s[0:1], 40
    v_and_b32 v1, 63, v0
    v_lshrrev_b32 v2, 6, v0
    v_lshlrev_b32 v1, 4, v1
    s_and_b32 s8, s2, 7
    s_lshr_b32 s9, s2, 3
    v_readfirstlane_b32 s10, v2
    s_lshl_b32 s8, s8, 1
    s_and_b32 s11, s9, 1
    s_add_u32 s8, s8, s11
    s_lshr_b32 s9, s9, 1
    s_mov_b32 s6, {WS_SIZE}
    s_mov_b32 s7, 0x00020000
    s_lshl_b32 s12, s8, 18
    s_add_u32 s12, s12, {KV_BASE}
    s_lshl_b32 s13, s8, 17
    s_lshl_b32 s14, s9, 13
    s_add_u32 s13, s13, s14
    s_add_u32 s13, s13, {QF_BASE}
    s_lshl_b32 s14, s10, 16
    s_add_u32 s14, s14, s12
    """)
    for s, d in enumerate([0, 1, 3, 2]):
        a(f"""
        s_add_u32 s{16+s}, s10, {d}
        s_and_b32 s{16+s}, s{16+s}, 3
        s_lshl_b32 s{20+s}, s{16+s}, 11
        s_add_u32 s{20+s}, s{20+s}, s13
        """)
    a("s_waitcnt lgkmcnt(0)")
    nload = [0]
    loadidx = {}
    def load(dst, soff, imm, tag=None):
        a(f"buffer_load_dwordx4 {dst}, v1, s[4:7], {soff} offen offset:{imm}")
        nload[0] += 1
        if tag: loadidx[tag] = nload[0]
    load(vr(KK, 4), "s12", 0); load(vr(KK+4, 4), "s12", 1024, "KK")
    for s in range(2):
        load(vr(Q0+8*s, 4), f"s{20+s}", 0); load(vr(Q0+8*s+4, 4), f"s{20+s}", 1024, f"Q{s}")
    a("s_mov_b32 s24, s9")
    def slot_addr():
        return f"""
        s_and_b32 s25, s24, 15
        s_lshl_b32 s25, s25, 12
        s_add_u32 s25, s25, s14
        s_add_u32 s24, s24, 1
        """
    def load_slot(i):
        a(slot_addr())
        for f in range(4):
            load(ar(16*i+4*f, 4), "s25", 1024*f, f"slot{i}" if f == 3 else None)
    load_slot(0)
    for s in range(2, 4):
        load(vr(Q0+8*s, 4), f"s{20+s}", 0); load(vr(Q0+8*s+4, 4), f"s{20+s}", 1024, f"Q{s}")
    for i in range(1, 13):
        load_slot(i)
    a(f"""
    s_lshl_b32 s26, s16, 13
    v_add_u32 v{V_WA}, s26, v1
    s_lshl_b32 s26, s17, 13
    s_add_u32 s26, s26, 4096
    v_add_u32 v{V_WB}, s26, v1
    s_lshl_b32 s26, s18, 13
    v_add_u32 v{V_RC}, s26, v1
    s_lshl_b32 s26, s18, 12
    s_add_u32 s26, s26, 32768
    v_add_u32 v{V_WC}, s26, v1
    s_lshl_b32 s26, s19, 12
    s_add_u32 s26, s26, 32768
    v_add_u32 v{V_RD}, s26, v1
    s_mov_b32 s28, 0
    s_mov_b32 s29, -1
    """)
    sc = Sched(a)
    def vmwait(tag):
        return f"s_waitcnt vmcnt({nload[0] - loadidx[tag]})"
    def m_zero(s):
        return ["s_mov_b64 exec, s[28:29]", f"v_mov_b32 v{Q0+8*s+6}, 0", f"v_mov_b32 v{Q0+8*s+7}, 0", "s_mov_b64 exec, -1"]
    def m_mfma(s, tmp):
        return [f"v_mfma_f32_32x32x16_bf16 {vr(tmp,16)}, {vr(KK,4)}, {vr(Q0+8*s,4)}, 0",
                f"v_mfma_f32_32x32x16_bf16 {vr(tmp,16)}, {vr(KK+4,4)}, {vr(Q0+8*s+4,4)}, {vr(tmp,16)}"]
    def m_fin(s, tmp):
        return [f"v_cvt_pk_bf16_f32 v{T0}, -v{tmp}, -v{tmp}",
                f"v_lshlrev_b32 v{T0}, 16, v{T0}",
                f"v_sub_f32 v{T0}, -v{tmp}, v{T0}",
                "s_mov_b64 exec, s[28:29]",
                f"v_cvt_pk_bf16_f32 v{Q0+8*s+6}, -v{tmp}, v{T0}",
                "s_mov_b64 exec, -1"]
    a(vmwait("Q1"))
    for s in range(2):
        for l in m_zero(s): a(l)
    a("s_nop 1")
    for s in range(2):
        for l in m_mfma(s, O0 + 32 + 16*s): a(l)
    a("s_nop 7")
    for l in m_fin(0, O0 + 32): a(l)
    a("s_nop 3")
    for l in m_fin(1, O0 + 48): a(l)
    a("s_nop 0")

    NT = 64
    stream = []
    def Ex(t, r): return (f"v_exp_f32 v{E0+r}, v{S0+16*(t&1)+r}", 8, f"E{t}_{r}", [(f"QKb{t}", 13)])
    def Cv(t, c): return (f"v_cvt_pk_bf16_f32 v{P0+8*(t%NP)+c}, v{E0+2*c}, v{E0+2*c+1}", 4, f"C{t}_{c}",
                          [(f"E{t}_{2*c+1}", 1)] + ([(f"PV{'a' if c < 4 else 'b'}{t-NP}", 0)] if t >= NP else []))
    for t in range(NT + 1):
        for g in range(4):
            cs = [(t-1, 6), (t-1, 7)] if g == 0 else [(t, 2*g-2), (t, 2*g-1)]
            for (tt, c) in cs:
                if 0 <= tt < NT: stream.append(Cv(tt, c))
            if t < NT:
                for r in range(4*g, 4*g+4): stream.append(Ex(t, r))
    qk = []; pv = []
    seen_slot = set()
    for t in range(NT):
        qs, ks = qslot(t), kslot(t)
        Sb = vr(S0+16*(t&1), 16)
        deps = [(f"E{t-2}_15", 0)] if t >= 2 else []
        if qs >= 2: deps.append((f"M{qs}", 2))
        pre = []
        if ks not in seen_slot:
            seen_slot.add(ks); pre = [("vm", f"slot{ks}")]
        qk.append((pre, f"v_mfma_f32_32x32x16_bf16 {Sb}, {ar(16*ks,4)}, {vr(Q0+8*qs,4)}, 0", f"QKa{t}", deps))
        qk.append(([], f"v_mfma_f32_32x32x16_bf16 {Sb}, {ar(16*ks+4,4)}, {vr(Q0+8*qs+4,4)}, {Sb}", f"QKb{t}", [(f"QKa{t}", 0)]))
        Ob = vr(oacc(qs), 16)
        d = []
        if t == 32: d = [("X1done", 2)]
        if t == 48: d = [("X2done", 0)]
        cin = "0" if t < 2 else Ob
        pv.append(([], f"v_mfma_f32_32x32x16_bf16 {Ob}, {ar(16*ks+8,4)}, {vr(P0+8*(t%NP),4)}, {cin}", f"PVa{t}", [(f"C{t}_3", 2)] + d))
        pv.append(([], f"v_mfma_f32_32x32x16_bf16 {Ob}, {ar(16*ks+12,4)}, {vr(P0+8*(t%NP)+4,4)}, {Ob}", f"PVb{t}", [(f"C{t}_7", 2)]))
    side = []
    def S(text, name=None, deps=(), cost=4, mf=False): side.append((text, cost, name, list(deps), mf))
    for k, i in enumerate(range(13, 16)):
        first = True
        for l in slot_addr().strip().split("\n"):
            S(l.strip(), deps=[(f"QKa{2*k+2}", 0)] if first else []); first = False
        for f in range(4):
            S(("load", ar(16*i+4*f, 4), "s25", 1024*f, f"slot{i}" if f == 3 else None))
    for s in range(2, 4):
        tmp = O0 + 32 + 16*(s-2)
        S(("vm", f"Q{s}"), deps=[(f"QKa{8+4*s}", 0)])
        S("\n".join(m_zero(s)), name=f"MZ{s}", cost=16)
        mm = m_mfma(s, tmp)
        S(mm[0], deps=[(f"MZ{s}", 2)], cost=8, mf=True)
        S(mm[1], name=f"MM{s}", cost=8, mf=True)
        mfz = m_fin(s, tmp)
        S(mfz[0], deps=[(f"MM{s}", 14)])
        S(mfz[1]); S(mfz[2])
        S("\n".join(mfz[3:6]), name=f"M{s}", cost=12)
    for g in range(4):
        S(f"ds_write_b128 v{V_WA}, {vr(O0+4*g,4)} offset:{1024*g}", deps=[("PVb30", 14)], cost=8)
    for g in range(4):
        S(f"ds_write_b128 v{V_WB}, {vr(O0+16+4*g,4)} offset:{1024*g}", deps=[("PVb31", 14)], cost=8, name=f"W1_{g}")
    S("s_waitcnt lgkmcnt(0)\ns_barrier", deps=[("W1_3", 8)], cost=8)
    for g in range(4):
        S(f"ds_read_b128 {vr(O0+32+4*g,4)}, v{V_RC} offset:{1024*g}", cost=8)
    for g in range(4):
        S(f"ds_read_b128 {vr(O0+48+4*g,4)}, v{V_RC} offset:{4096+1024*g}", cost=8, name=f"R1_{g}")
    S("s_waitcnt lgkmcnt(0)", deps=[("R1_3", 24)])
    for r in range(8):
        S(f"v_pk_add_f32 {vr(O0+32+2*r,2)}, {vr(O0+32+2*r,2)}, {vr(O0+48+2*r,2)}", name="X1done" if r == 7 else None)
    for g in range(4):
        S(f"ds_write_b128 v{V_WC}, {vr(O0+32+4*g,4)} offset:{1024*g}", deps=[("PVb47", 14)], cost=8, name=f"W2_{g}")
    S("s_waitcnt lgkmcnt(0)\ns_barrier", deps=[("W2_3", 8)], cost=8)
    for g in range(4):
        S(f"ds_read_b128 {vr(O0+4*g,4)}, v{V_RD} offset:{1024*g}", cost=8, name=f"R2_{g}")
    S("s_waitcnt lgkmcnt(0)", deps=[("R2_3", 24)], name="X2done")

    def do_text(x, cost, name=None):
        if isinstance(x, tuple):
            if x[0] == "vm":
                sc.emit(vmwait(x[1]), 4, name)
            elif x[0] == "load":
                load(x[1], x[2], x[3], x[4]); sc.n += 1; sc.t += 4
        else:
            ls = x.split("\n")
            for l in ls[:-1]: sc.emit(l, cost // len(ls))
            sc.emit(ls[-1], cost // len(ls), name)
    def try_mfma():
        if sc.t < sc.mfree: return False
        for q in (qk, pv):
            if q and sc.ready(q[0][3]):
                pre, text, nm, _ = q.pop(0)
                for p in pre: do_text(p, 4)
                sc.mfree = sc.t + 32
                sc.emit(text, 8, nm)
                return True
        return False
    def try_side():
        if side and sc.ready(side[0][3]):
            if side[0][4] and sc.t < sc.mfree: return False
            text, cost, nm, _, mf = side.pop(0)
            if mf: sc.mfree = sc.t + 32
            do_text(text, cost, nm)
            return True
        return False
    nops = 0
    si = 0
    while si < len(stream) or qk or pv or side:
        try_mfma()
        try_side()
        if si < len(stream):
            text, cost, nm, deps = stream[si]
            if sc.ready(deps):
                sc.emit(text, cost, nm); si += 1
                continue
        sc.emit("s_nop 0", 4); nops += 1
    print(f"k2 schedule: est cycles {sc.t}, instrs {sc.n}, nops {nops}")
    OF = O0
    a(f"""
    s_nop 7
    s_nop 5
    """)
    a.label(f"{P}_fin")
    a(f"""
    v_mov_b32 v{T0}, v{OF+12}
    v_mov_b32 v{T0+1}, v{OF+12}
    s_lshl_b32 s26, s9, 2
    s_add_u32 s26, s26, s19
    v_permlane32_swap_b32 v{T0}, v{T0+1}
    s_lshl_b32 s26, s26, 15
    s_lshl_b32 s27, s8, 11
    s_add_u32 s26, s26, s27
    s_add_u32 s26, s26, {OF_BASE}
    v_rcp_f32 v{T0+2}, v{T0+1}
    """)
    a(f"""
    v_max3_f32 v{T0+3}, |v{OF}|, |v{OF+1}|, |v{OF+2}|
    """)
    for r in range(3, 15, 2):
        a(f"v_max3_f32 v{T0+3}, |v{OF+r}|, |v{OF+r+1}|, v{T0+3}")
    a(f"""
    v_max_f32 v{T0+3}, |v{OF+15}|, v{T0+3}
    v_add_f32 v{T0+4}, v{OF}, v{OF+1}
    """)
    for r in range(2, 16):
        a(f"v_add_f32 v{T0+4}, v{T0+4}, v{OF+r}")
    a(f"""
    s_mov_b32 s26+0, s26
    """.replace("s26+0", "s26"))
    a(f"""
    v_mov_b32 v{T0+5}, 0x71800000
    v_mov_b32 v{T0+6}, 0x30800000
    v_cmp_lt_f32 vcc, v{T0+1}, v{T0+5}
    v_cmp_gt_f32 s[32:33], v{T0+1}, v{T0+6}
    v_cmp_lt_f32 s[34:35], v{T0+3}, v{T0+5}
    v_cmp_o_f32 s[36:37], v{T0+4}, v{T0+4}
    s_and_b64 s[32:33], s[32:33], vcc
    s_and_b64 s[34:35], s[34:35], s[36:37]
    s_and_b64 s[32:33], s[32:33], s[34:35]
    s_cmp_eq_u64 s[32:33], -1
    s_cbranch_scc0 {P}_slow
    """)
    a.label(f"{P}_store")
    for r in range(16):
        a(f"v_mul_f32 v{OF+r}, v{OF+r}, v{T0+2}")
    for r in range(8):
        a(f"v_cvt_pk_bf16_f32 v{P0+r}, v{OF+2*r}, v{OF+2*r+1}")
    a(f"""
    s_mov_b64 exec, s[28:29]
    v_mov_b32 v{P0+6}, 0
    v_mov_b32 v{P0+7}, 0
    s_mov_b64 exec, -1
    buffer_store_dwordx4 {vr(P0,4)}, v1, s[4:7], s26 offen
    buffer_store_dwordx4 {vr(P0+4,4)}, v1, s[4:7], s26 offen offset:1024
    s_endpgm
    """)
    a.label(f"{P}_slow")
    Q3 = Q0 + 24
    M = T0 + 8
    a(f"""
    s_mov_b64 exec, s[28:29]
    v_mov_b32 v{Q3+6}, 0
    s_mov_b64 exec, -1
    v_mov_b32 v{M}, 0xff800000
    s_mov_b32 s40, s12
    s_mov_b32 s41, 0
    """)
    a.label(f"{P}_slow1")
    a(f"""
    buffer_load_dwordx4 {vr(KK,4)}, v1, s[4:7], s40 offen
    buffer_load_dwordx4 {vr(KK+4,4)}, v1, s[4:7], s40 offen offset:1024
    s_waitcnt vmcnt(0)
    v_mfma_f32_32x32x16_bf16 {vr(S0,16)}, {vr(KK,4)}, {vr(Q3,4)}, 0
    v_mfma_f32_32x32x16_bf16 {vr(S0,16)}, {vr(KK+4,4)}, {vr(Q3+4,4)}, {vr(S0,16)}
    s_nop 15
    """)
    for r in range(0, 16, 2):
        a(f"v_max3_f32 v{M}, v{S0+r}, v{S0+r+1}, v{M}")
    a(f"""
    s_add_u32 s40, s40, 4096
    s_add_u32 s41, s41, 1
    s_cmp_lt_u32 s41, 64
    s_cbranch_scc1 {P}_slow1
    v_mov_b32 v{M+1}, v{M}
    s_nop 1
    v_permlane32_swap_b32 v{M}, v{M+1}
    s_nop 1
    v_max_f32 v{M}, v{M}, v{M+1}
    s_mov_b32 s40, s12
    s_mov_b32 s41, 0
    """)
    for r in range(16):
        a(f"v_mov_b32 v{OF+r}, 0")
    a.label(f"{P}_slow2")
    VV = P0 + 16
    a(f"""
    buffer_load_dwordx4 {vr(KK,4)}, v1, s[4:7], s40 offen
    buffer_load_dwordx4 {vr(KK+4,4)}, v1, s[4:7], s40 offen offset:1024
    buffer_load_dwordx4 {vr(VV,4)}, v1, s[4:7], s40 offen offset:2048
    buffer_load_dwordx4 {vr(VV+4,4)}, v1, s[4:7], s40 offen offset:3072
    s_waitcnt vmcnt(0)
    v_mfma_f32_32x32x16_bf16 {vr(S0,16)}, {vr(KK,4)}, {vr(Q3,4)}, 0
    v_mfma_f32_32x32x16_bf16 {vr(S0,16)}, {vr(KK+4,4)}, {vr(Q3+4,4)}, {vr(S0,16)}
    s_nop 15
    """)
    for r in range(16):
        a(f"v_sub_f32 v{S0+r}, v{S0+r}, v{M}")
    for r in range(16):
        a(f"v_exp_f32 v{E0+r}, v{S0+r}")
    a("s_nop 0")
    for r in range(8):
        a(f"v_cvt_pk_bf16_f32 v{P0+r}, v{E0+2*r}, v{E0+2*r+1}")
    a(f"""
    s_nop 1
    v_mfma_f32_32x32x16_bf16 {vr(OF,16)}, {vr(VV,4)}, {vr(P0,4)}, {vr(OF,16)}
    v_mfma_f32_32x32x16_bf16 {vr(OF,16)}, {vr(VV+4,4)}, {vr(P0+4,4)}, {vr(OF,16)}
    s_add_u32 s40, s40, 4096
    s_add_u32 s41, s41, 1
    s_cmp_lt_u32 s41, 64
    s_cbranch_scc1 {P}_slow2
    s_nop 15
    v_mov_b32 v{T0}, v{OF+12}
    v_mov_b32 v{T0+1}, v{OF+12}
    s_nop 1
    v_permlane32_swap_b32 v{T0}, v{T0+1}
    s_nop 1
    v_rcp_f32 v{T0+2}, v{T0+1}
    s_nop 1
    s_branch {P}_store
    """)
    a.label(f"{P}_end")
    a("s_endpgm")
    return a.text(), kernel_desc(name, 512, 256, 48), f"; @launch kernel={name} grid=(256,1,1) block=(256,1,1) lds={K2_LDS}"
```

```python
from asmlib import *
from k1 import QF_BASE, KV_BASE, OF_BASE, WS_SIZE, WO_BYTES, X_BYTES

K3_WO = 57 * 1024
K3_LDS = K3_WO + 65536

def gen_k3(name="oproj_kernel"):
    a = Asm()
    a.raw(kernel_header(name))
    P = "K3"
    a(f"""
    s_lshr_b32 s17, s2, 3
    s_cmp_ge_u32 s17, 28
    s_cbranch_scc1 {P}_end
    s_load_dwordx4 s[4:7], s[0:1], 16
    s_load_dwordx2 s[12:13], s[0:1], 40
    v_and_b32 v1, 63, v0
    v_lshrrev_b32 v2, 6, v0
    s_and_b32 s16, s2, 7
    s_mul_i32 s16, s16, 28
    s_add_u32 s16, s16, s17
    v_readfirstlane_b32 s19, v2
    s_mul_i32 s18, s16, 1171
    s_lshr_b32 s18, s18, 13
    s_mul_i32 s17, s18, 7
    s_sub_u32 s17, s16, s17
    s_waitcnt lgkmcnt(0)
    s_mov_b32 s8, s6
    s_mov_b32 s9, s7
    s_mov_b32 s6, {WO_BYTES}
    s_mov_b32 s7, 0x00020000
    s_mov_b32 s10, {X_BYTES}
    s_mov_b32 s11, 0x00020000
    s_mov_b32 s14, {WS_SIZE}
    s_mov_b32 s15, 0x00020000
    """)
    a(f"""
    v_lshlrev_b32 v2, 4, v1
    v_lshrrev_b32 v5, 3, v1
    v_and_b32 v6, 7, v1
    v_bfe_u32 v7, v1, 4, 1
    v_lshlrev_b32 v7, 2, v7
    v_xor_b32 v6, v6, v7
    v_mul_u32_u24 v5, 896, v5
    v_lshl_add_u32 v3, v6, 4, v5
    s_lshl_b32 s20, s18, 16
    s_add_u32 s20, s20, {OF_BASE}
    s_lshl_b32 s21, s19, 10
    s_add_u32 s20, s20, s21
    s_add_u32 s22, s21, {K3_WO}
    s_lshl_b32 s23, s17, 7
    s_mul_i32 s24, s19, {8*896}
    s_add_u32 s23, s23, s24
    """)
    a(f"""
    s_lshr_b32 s24, s19, 1
    s_lshl_b32 s24, s24, 15
    s_and_b32 s25, s19, 1
    s_lshl_b32 s25, s25, 10
    s_add_u32 s24, s24, s25
    s_lshl_b32 s20, s18, 16
    s_add_u32 s20, s20, {OF_BASE}
    s_add_u32 s20, s20, s24
    s_add_u32 s22, s24, {K3_WO}
    """)
    for i in range(16):
        a(f"""
        s_add_u32 m0, s22, {2048*i}
        s_add_u32 s26, s20, {2048*i}
        buffer_load_dwordx4 v2, s[12:15], s26 offen lds
        """)
        if i < 14:
            a(f"""
            s_add_u32 m0, s21, {4096*i}
            s_add_u32 s26, s23, {32*896*i}
            buffer_load_dwordx4 v3, s[4:7], s26 offen lds
            """)
    a(f"""
    s_mov_b32 m0, {56*1024}
    s_mov_b32 s26, {448*896}
    buffer_load_dwordx4 v3, s[4:7], s26 offen lds
    """)
    a(f"""
    v_bfe_u32 v5, v1, 4, 1
    v_bfe_u32 v6, v1, 1, 1
    v_lshl_add_u32 v5, v5, 1, v6
    s_and_b32 s25, s19, 1
    s_lshl_b32 s25, s25, 2
    v_add_u32 v5, s25, v5
    v_bfe_u32 v6, v1, 3, 1
    v_lshlrev_b32 v6, 2, v6
    v_xor_b32 v5, v5, v6
    v_lshlrev_b32 v5, 4, v5
    v_and_b32 v6, 1, v1
    v_lshl_add_u32 v5, v6, 3, v5
    v_bfe_u32 v6, v1, 2, 2
    v_lshl_add_u32 v5, v6, 7, v5
    v_lshrrev_b32 v6, 5, v1
    v_lshl_add_u32 v4, v6, 9, v5
    s_lshr_b32 s24, s19, 1
    s_lshl_b32 s25, s24, 15
    s_add_u32 s25, s25, {K3_WO}
    v_add_u32 v5, s25, v2
    s_waitcnt vmcnt(0)
    s_barrier
    """)
    ACC = 16; WF = 32; OFR = 64
    for bt in range(8):
        for k in range(4):
            ks = bt*4 + k
            hd, f = ks >> 1, ks & 1
            b = (bt & 1) * 16
            a(f"ds_read_b64_tr_b16 {vr(WF+b+4*k,2)}, v4 offset:{(28*hd+16*f)*128}")
            a(f"ds_read_b64_tr_b16 {vr(WF+b+4*k+2,2)}, v4 offset:{(28*hd+16*f+8)*128}")
            a(f"ds_read_b128 {vr(OFR+b+4*k,4)}, v5 offset:{ks*1024}")
        if bt:
            pb = ((bt-1) & 1) * 16
            a("s_waitcnt lgkmcnt(12)")
            for k in range(4):
                c = "0" if (bt == 1 and k == 0) else vr(ACC, 16)
                a(f"v_mfma_f32_32x32x16_bf16 {vr(ACC,16)}, {vr(WF+pb+4*k,4)}, {vr(OFR+pb+4*k,4)}, {c}")
    a("s_waitcnt lgkmcnt(0)")
    for k in range(4):
        a(f"v_mfma_f32_32x32x16_bf16 {vr(ACC,16)}, {vr(WF+16+4*k,4)}, {vr(OFR+16+4*k,4)}, {vr(ACC,16)}")
    a(f"""
    s_lshl_b32 s20, s18, 6
    s_lshl_b32 s21, s24, 5
    s_add_u32 s20, s20, s21
    s_mul_i32 s20, s20, 896
    s_lshl_b32 s21, s17, 7
    s_add_u32 s20, s20, s21
    s_and_b32 s21, s19, 1
    s_lshl_b32 s21, s21, 6
    s_add_u32 s20, s20, s21
    v_and_b32 v6, 31, v1
    v_mul_u32_u24 v6, 896, v6
    v_lshrrev_b32 v7, 5, v1
    v_lshl_add_u32 v6, v7, 3, v6
    s_nop 3
    """)
    for r in range(8):
        a(f"v_cvt_pk_bf16_f32 v{WF+r}, v{ACC+2*r}, v{ACC+2*r+1}")
    for g in range(4):
        a(f"buffer_store_dwordx2 {vr(WF+2*g,2)}, v6, s[8:11], s20 offen offset:{16*g}")
    a.label(f"{P}_end")
    a("s_endpgm")
    return a.text(), kernel_desc(name, 96, 96, 40), f"; @launch kernel={name} grid=(256,1,1) block=(256,1,1) lds={K3_LDS}"
```

```python
import sys
from k1 import gen_k1
from k2 import gen_k2
from k3 import gen_k3
HDR = """; Kernarg layout for this problem (48 bytes, ptrs only, base s[0:1]):
"""
def build(parts, out):
    s = HDR + "\n".join(p[2] for p in parts) + "\n"
    s += '.amdgcn_target "amdgcn-amd-amdhsa--gfx950"\n.text\n'
    s += "\n".join(p[0] for p in parts)
    s += '.section .rodata,"a"\n'
    s += "".join(p[1] for p in parts)
    open(out, "w").write(s)
if __name__ == "__main__":
    out = sys.argv[1] if len(sys.argv) > 1 else "standalone__mha_block__prompt.s"
    build([gen_k1(), gen_k2(), gen_k3()], out)
```

```python
import sys
from k1 import gen_k1
from k2 import gen_k2
from k3 import gen_k3
from asmlib import *
from build import HDR
def empty(name="empty_kernel", grid=256):
    return (kernel_header(name) + "    s_endpgm\n", kernel_desc(name, 8, 8, 16), f"; @launch kernel={name} grid=({grid},1,1) block=(256,1,1) lds=0")
def build(parts, order, out):
    s = HDR + "\n".join(parts[i][2] for i in order) + "\n"
    s += '.amdgcn_target "amdgcn-amd-amdhsa--gfx950"\n.text\n'
    s += "\n".join(p[0] for p in parts)
    s += '.section .rodata,"a"\n'
    s += "".join(p[1] for p in parts)
    open(out, "w").write(s)
parts = [gen_k1(), gen_k2(), gen_k3(), empty()]
import os
os.makedirs("var", exist_ok=True)
build(parts, [0,1,2], "v_base.s")
build(parts, [0,1,2,3], "v_e1.s")
build(parts, [0,1,2,3,3,3,3], "v_e4.s")
build(parts, [0,0,1,2], "v_k1x2.s")
build(parts, [0,1,1,2], "v_k2x2.s")
build(parts, [0,1,2,2], "v_k3x2.s")
```

```python
import re
import os
RT = int(os.environ.get('RT', '0'))
NM = 10
def instrument(part, ki):
    text, desc, launch = part
    name = re.search(r"kernel=(\w+)", launch).group(1) if "kernel=" in launch else re.search(r"\.globl (\w+)", text).group(1)
    out = []
    B = 72
    for l in text.split("\n"):
        s = l.strip()
        if s == f"{name}:":
            out.append(l)
            out.append("    ; STAMP2" + (" RTMODE" if RT else ""))
            out.append(f"    s_memrealtime s[72:73]\n    s_memtime s[74:75]")
            for i in range(NM): out.append(f"    s_mov_b64 s[{80+2*i}:{81+2*i}], 0")
        elif s == "s_endpgm":
            out.append(f"    s_branch {name}_stamp")
        elif s.startswith("; MID"):
            i = int(s[5:])
            out.append(f"    {'s_memrealtime' if RT else 's_memtime'} s[{80+2*i}:{81+2*i}]\n    s_waitcnt lgkmcnt(0)")
        else:
            out.append(l)
    out.append(f"""{name}_stamp:
    s_mov_b64 exec, -1
    s_waitcnt vmcnt(0) lgkmcnt(0)
    s_memrealtime s[76:77]
    s_memtime s[78:79]
    s_load_dwordx2 s[64:65], s[0:1], 40
    s_waitcnt lgkmcnt(0)
    s_mov_b32 s66, 0x2000000
    s_mov_b32 s67, 0x00020000
    s_mov_b32 s100, 0x54414d50
    s_mov_b32 s101, 0x53
    v_and_b32 v1, 63, v0
    v_cmp_eq_u32 vcc, 0, v1
    s_and_saveexec_b64 s[68:69], vcc
    s_cbranch_execz {name}_stamp_end
    s_lshl_b32 s70, s2, 10
    s_add_u32 s70, s70, {(16<<20) + ki*264*1024}
    v_lshlrev_b32 v1, 1, v0
""" + "\n".join(f"""    v_mov_b32 v2, s{72+2*i}
    v_mov_b32 v3, s{73+2*i}
    buffer_store_dwordx2 v[2:3], v1, s[64:67], s70 offen offset:{8*i}""" for i in range(15)) + f"""
{name}_stamp_end:
    s_endpgm
""")
    desc = re.sub(r"next_free_sgpr \d+", "next_free_sgpr 102", desc)
    return ("\n".join(out), desc, launch)
```

```python
from asmlib import *
import struct, math, os

QF_BASE = 0
KV_BASE = 2 << 20
OF_BASE = 6 << 20
FA_BASE = 8 << 20
FR_BASE = (8 << 20) + 262144
WS_SIZE = 9 << 20
X_BYTES = 2048 * 448 * 2
W_BYTES = 448 * 1344 * 2
WO_BYTES = 448 * 448 * 2
QSCALE = math.log2(math.e) / math.sqrt(28.0)
def f32bits(x): return struct.unpack("<I", struct.pack("<f", x))[0]
def env(n, d): return int(os.environ.get(n, str(d)))

A_SLOT = 24576
L_X2 = 98304
F2E = env('F2E', 1); XE = env('XE', 3); LF0 = env('LF0', 2); LF1 = env('LF1', 4)
LDS_TOTAL = 163840
L_X1A, L_X1B = 0, 32768
L_WO = 61440
L_Q = 65536
L_TOK = 162816
L_OST = 0
L_RED = 32768
POLL_MAX = 20000
DROP = 0x40000000

SX, SW, SWS, SWO, SOUT, SDBG = 4, 8, 12, 16, 20, 24
sWV, sG, sU, sH, sJ, sT, sCB, sRB = 28, 29, 30, 31, 32, 33, 34, 35
sTOK = 36; sF2 = 37; sHI = 38; sVM = 40; sOA = 68; sFR = 69
sTY = sT; sT0 = sCB
Q0 = 8; S0 = 40; O0 = 72; P0 = 104; NP = 3; KK = 104
V_WA, V_WB, V_RC, V_WO, V_RD, V_T = 2, 3, 4, 5, 6, 7
PRE = env("PRE", 2); PFD = env("PFD", 3); PRIO = env("PRIO", 1); SPC = env("SPC", 44)
DEPTH = env("DEPTH", 2); WSP = env("WSP", 1)
XB1 = env("XB1", 8); XB2 = env("XB2", 12); BM = env("BM", 0); CM = env("CM", 0); PFRAG = env("PFRAG", 0); AM = env("AM", 0); HSL = env("HSL", 0); HOFF = env("HOFF", 1020); OST = os.environ.get("OST", "")

class Sched:
    def __init__(self, a):
        self.a = a; self.n = 0; self.t = 0; self.mfree = 0; self.done = {}
    def emit(self, s, cost=4, name=None):
        self.a(s)
        if name: self.done[name] = self.n
        self.n += 1; self.t += cost
    def ready(self, deps):
        for nm, dist in deps:
            if nm not in self.done: return False
            if self.n - self.done[nm] - 1 < dist: return False
        return True

NT = 32
def qslot(t): return (t & 1) if t < 16 else (2 if t < 24 else 3)
def kslot(t): return (t >> 1) if t < 16 else (t - 16 if t < 24 else t - 24)
def oacct(t):
    if t < 16: return O0 + 16 * (t & 1)
    return O0 + (0 if (16 <= t < 20 or t >= 28) else 16)

def srd(a, d, lo, size):
    a(f"""
    s_mov_b32 s{d}, s{lo}
    s_mov_b32 s{d+1}, s{lo+1}
    s_mov_b32 s{d+2}, {size}
    s_mov_b32 s{d+3}, 0x00020000
    """)

class Asm2(Asm):
    def comment(self, s):
        if (BM or CM or AM) and s.startswith("MID"): return
        if s.startswith("AMID"):
            if AM: super().comment(s[1:])
            return
        if s.startswith("CMID"):
            if CM: super().comment(s[1:])
            return
        if s.startswith("BMID"):
            if BM: super().comment(s[1:])
            return
        super().comment(s)

def poll(a, lbl, done, addr, tok="v[10:11]", tmp="v[14:15]", cnt="s56", mask=None):
    a(f"s_mov_b32 {cnt}, 0")
    if mask: a(f"s_mov_b64 exec, {mask}")
    a.label(lbl)
    a(f"""
    buffer_load_dwordx2 {tmp}, {addr}, s[{SWS}:{SWS+3}], 0 offen sc1
    s_add_u32 {cnt}, {cnt}, 1
    s_waitcnt vmcnt(0)
    v_cmp_ne_u64 vcc, {tok}, {tmp}
    s_cmp_gt_u32 {cnt}, {POLL_MAX}
    s_cbranch_scc1 {done}
    s_and_b64 exec, exec, vcc
    s_cbranch_scc1 {lbl}
    """)
    a.label(done)
    a("s_mov_b64 exec, -1")

def gen(name="standalone__mha_block__prompt_kernel"):
    a = Asm2()
    a.raw(kernel_header(name))
    a(f"""
    s_cmp_ge_u32 s2, 256
    s_cbranch_scc1 L_end
    s_load_dwordx8 s[44:51], s[0:1], 0
    s_load_dwordx4 s[52:55], s[0:1], 32
    v_and_b32 v1, 63, v0
    v_lshrrev_b32 v2, 6, v0
    s_and_b32 s42, s2, 7
    s_lshr_b32 s43, s2, 3
    v_readfirstlane_b32 s{sWV}, v2
    s_lshl_b32 s{sH}, s42, 1
    s_and_b32 s56, s43, 1
    s_add_u32 s{sH}, s{sH}, s56
    s_lshr_b32 s{sJ}, s43, 1
    s_and_b32 s56, s43, 3
    s_lshl_b32 s56, s56, 2
    s_lshl_b32 s57, s42, 3
    s_lshr_b32 s58, s43, 2
    s_add_u32 s57, s57, s58
    s_and_b32 s58, s42, 1
    s_mul_i32 s58, s58, 28
    s_add_u32 s58, s58, s43
    s_lshr_b32 s59, s58, 3
    s_lshl_b32 s59, s59, 2
    s_add_u32 s59, s59, 14
    s_and_b32 s58, s58, 7
    s_bfe_u32 s60, s42, 0x10001
    s_lshl_b32 s60, s60, 3
    s_add_u32 s58, s58, s60
    s_cmp_ge_u32 s43, 28
    s_cselect_b32 s60, 2, 1
    s_cmp_ge_u32 s42, 4
    s_cselect_b32 s{sT0}, s59, s56
    s_cselect_b32 s{sRB}, s58, s57
    s_cselect_b32 s{sTY}, s60, 0
    s_lshr_b32 s{sG}, s{sWV}, 2
    s_and_b32 s{sU}, s{sWV}, 3
    s_cmp_eq_u32 s{sG}, 0
    s_cbranch_scc1 L_A_cons
    """)
    def common_setup():
        srd(a, SWS, 54, WS_SIZE); srd(a, SWO, 48, WO_BYTES); srd(a, SOUT, 50, X_BYTES); srd(a, SDBG, 52, 256)
        a(f"""
        s_mov_b32 s{sHI}, 0
        s_mov_b32 s{sHI+1}, -1
        s_mov_b32 s{sVM}, 0x0fffffff
        s_mov_b32 s{sVM+1}, 0x0fffffff
        s_add_u32 s56, s{sU}, 2
        s_and_b32 s56, s56, 3
        s_lshl_b32 s57, s{sJ}, 2
        s_add_u32 s56, s56, s57
        s_lshl_b32 s56, s56, 15
        s_lshl_b32 s57, s{sH}, 11
        s_add_u32 s56, s56, s57
        s_lshl_b32 s57, s{sG}, 10
        s_add_u32 s56, s56, s57
        s_add_u32 s{sOA}, s56, {OF_BASE}
        s_lshl_b32 s{sFR}, s{sJ}, 11
        s_add_u32 s{sFR}, s{sFR}, {FR_BASE}
        s_mov_b32 s{sF2}, {DROP}
        v_lshlrev_b32 v122, 4, v1
        v_mov_b32 v124, -1
        v_mov_b32 v125, -1
        v_mov_b32 v126, -1
        v_mov_b32 v127, -1
        buffer_store_dwordx4 v[124:127], v122, s[{SWS}:{SWS+3}], s{sOA} offen sc1
        """)
    def vpad_const():
        a(f"""
        v_and_b32 v78, 31, v1
        v_cmp_eq_u32 vcc, 28, v78
        v_mov_b32 v78, 0
        v_mov_b32 v79, 0x3f803f80
        v_cndmask_b32 v78, v78, v79, vcc
        """)
    def vpad_init():
        vpad_const()
        for i in range(8):
            for r in range(8): a(f"v_accvgpr_write_b32 a{16*i+8+r}, v78")
    def tok_check(p, tk, z, cn="s56"):
        a(f"""
        s_mov_b32 {cn}, 0
        v_cmp_eq_u32 vcc, 0, v{tk}
        s_cbranch_vccz {p}_done
        """)
        a.label(p)
        a(f"""
        buffer_load_dwordx2 v[{tk}:{tk+1}], v{z}, s[{SDBG}:{SDBG+3}], 0 offen sc1
        s_add_u32 {cn}, {cn}, 1
        s_waitcnt vmcnt(0)
        v_cmp_eq_u32 vcc, 0, v{tk}
        s_cmp_gt_u32 {cn}, {POLL_MAX}
        s_cbranch_scc1 {p}_done
        s_cbranch_vccnz {p}
        """)
        a.label(f"{p}_done")
    def b_setup_s():
        a(f"""
        s_lshl_b32 s42, s{sH}, 18
        s_add_u32 s42, s42, {KV_BASE}
        s_lshl_b32 s44, s{sWV}, 14
        s_add_u32 s44, s44, s42
        """)
        for s_, d in enumerate([0, 1, 3, 2]):
            a(f"s_add_u32 s{45+s_}, s{sU}, {d}\ns_and_b32 s{45+s_}, s{45+s_}, 3")
        a(f"""
        s_and_b32 s66, s{sH}, 3
        s_mul_i32 s66, s66, 224
        s_lshl_b32 s51, s{sWV}, 10
        s_add_u32 s51, s51, {L_WO}
        s_cmp_eq_u32 s{sWV}, 7
        s_cselect_b32 s52, {32*896}, 0
        s_add_u32 s52, s52, s66
        """)
        for i in range(4):
            a(f"s_add_u32 s{56+i}, s{sJ}, {i}\ns_and_b32 s{56+i}, s{56+i}, 3\ns_lshl_b32 s{56+i}, s{56+i}, 12\ns_add_u32 s{56+i}, s{56+i}, s44\ns_add_u32 s{60+i}, s{56+i}, {32*4096}")
    def b_setup_v():
        a(f"""
        s_mul_i32 s49, s{sH}, 28
        v_and_b32 v32, 1, v1
        v_mul_u32_u24 v32, 27, v32
        v_add_u32 v32, s49, v32
        v_lshrrev_b32 v32, 5, v32
        v_bfe_u32 v33, v1, 1, 1
        v_mul_u32_u24 v33, 14, v33
        v_add3_u32 v32, v32, v33, 14
        v_bfe_u32 v33, v1, 2, 1
        v_lshl_add_u32 v32, v32, 5, v33
        s_lshl_b32 s49, s{sWV}, 1
        s_add_u32 s49, s49, 16
        v_add_u32 v32, s49, v32
        v_lshlrev_b32 v32, 7, v32
        v_add_u32 v{V_T}, {FA_BASE}, v32
        s_cmp_eq_u32 s{sWV}, 7
        s_cselect_b32 s49, 0, s{sWV}
        s_lshl_b32 s49, s49, 6
        v_add_u32 v32, s49, v1
        v_mul_u32_u24 v33, 586, v32
        v_lshrrev_b32 v33, 13, v33
        v_mul_u32_u24 v34, 14, v33
        v_sub_u32 v32, v32, v34
        v_mul_u32_u24 v33, 896, v33
        v_lshl_add_u32 v{V_WO}, v32, 4, v33
        v_lshlrev_b32 v1, 4, v1
        s_lshl_b32 s43, s{sG}, 14
        s_lshl_b32 s49, s45, 12
        s_add_u32 s49, s49, s43
        v_add_u32 v{V_WA}, s49, v1
        s_lshl_b32 s49, s46, 12
        s_add_u32 s49, s49, s43
        s_add_u32 s49, s49, {L_X1B}
        v_add_u32 v{V_WB}, s49, v1
        s_lshl_b32 s49, s47, 12
        s_add_u32 s49, s49, s43
        v_add_u32 v{V_RC}, s49, v1
        s_lshl_b32 s49, s48, 12
        s_add_u32 s49, s49, s43
        v_add_u32 v{V_RD}, s49, v1
        """)
        for s_ in range(4):
            a(f"s_lshl_b32 s49, s{45+s_}, 11\ns_add_u32 s49, s49, {L_Q}\nv_add_u32 v{O0+s_}, s49, v1")
    def b_setup():
        b_setup_s(); b_setup_v()
    a(f"""
    s_lshr_b32 s67, s{sT0}, 2
    s_add_u32 s67, s67, s{sRB}
    s_mul_i32 s57, s67, 147
    s_lshr_b32 s57, s57, 10
    s_mul_i32 s57, s57, 7
    s_sub_u32 s67, s67, s57
    s_mul_i32 s70, s{sRB}, {64*896}
    s_mul_i32 s57, s{sU}, {16*896}
    s_add_u32 s70, s70, s57
    s_lshl_b32 s71, s{sT0}, 6
    s_mul_i32 s57, s{sU}, {16*2688}
    s_add_u32 s71, s71, s57
    s_lshl_b32 s64, s{sU}, 11
    s_lshl_b32 s65, s{sU}, 12
    s_add_u32 s65, s65, 8192
    v_lshrrev_b32 v5, 3, v1
    v_and_b32 v6, 7, v1
    v_lshrrev_b32 v7, 1, v5
    v_xor_b32 v6, v6, v7
    v_mul_u32_u24 v5, 896, v5
    v_lshl_add_u32 v16, v6, 4, v5
    v_xor_b32 v17, 64, v16
    v_lshrrev_b32 v5, 4, v1
    v_and_b32 v6, 15, v1
    v_lshlrev_b32 v7, 2, v5
    v_xor_b32 v6, v6, v7
    v_mul_u32_u24 v5, 2688, v5
    v_lshl_add_u32 v18, v6, 4, v5
    s_waitcnt lgkmcnt(0)
    """)
    srd(a, SX, 44, X_BYTES); srd(a, SW, 46, W_BYTES)
    def adv(): return "s_add_u32 s67, s67, 1\ns_cmp_eq_u32 s67, 7\ns_cselect_b32 s67, 0, s67"
    def xpair(dst):
        a(f"""
        s_lshl_b32 s43, s67, 7
        s_add_u32 m0, s64, {dst}
        s_add_u32 s43, s43, s70
        buffer_load_dwordx4 v16, s[{SX}:{SX+3}], s43 offen lds
        s_add_u32 m0, s64, {dst + 1024}
        s_add_u32 s43, s43, {8*896}
        buffer_load_dwordx4 v17, s[{SX}:{SX+3}], s43 offen lds
        """)
    def issue_chunk(i):
        xpair((i % 4)*A_SLOT)
        a(f"s_mul_i32 s3, s67, {64*2688}")
        for qq in range(4):
            a(f"s_add_u32 m0, s65, {(i % 4)*A_SLOT + qq*1024}")
            a(f"s_add_u32 s3, s3, {4*2688}" if qq else "s_add_u32 s3, s3, s71")
            a(f"buffer_load_dwordx4 v18, s[{SW}:{SW+3}], s3 offen lds")
        a(adv())
    a(f"s_cmp_eq_u32 s{sTY}, 2\ns_cbranch_scc1 L_A_l0")
    issue_chunk(0); issue_chunk(1)
    a.label("L_A_l0")
    common_setup()
    vpad_init()
    a(f"""
    s_lshl_b32 s56, s{sJ}, 2
    s_add_u32 s56, s56, s{sU}
    s_lshr_b32 s57, s56, 1
    s_and_b32 s59, s57, 15
    s_mul_i32 s58, s{sH}, 28
    v_and_b32 v12, 1, v1
    v_mul_u32_u24 v12, 27, v12
    v_add_u32 v12, s58, v12
    v_lshrrev_b32 v12, 5, v12
    v_bfe_u32 v13, v1, 1, 1
    v_cmp_eq_u32 vcc, 1, v13
    v_mul_u32_u24 v13, 14, v13
    v_add_u32 v12, v12, v13
    v_mov_b32 v13, s57
    v_mov_b32 v9, s59
    v_cndmask_b32 v13, v13, v9, vcc
    v_lshl_add_u32 v12, v12, 5, v13
    s_and_b32 s59, s{sU}, 1
    s_mul_i32 s59, s59, 27
    s_add_u32 s59, s59, s58
    s_lshr_b32 s59, s59, 5
    s_lshr_b32 s60, s{sU}, 1
    s_mul_i32 s60, s60, 14
    s_add_u32 s59, s59, s60
    s_add_u32 s59, s59, 14
    s_lshl_b32 s59, s59, 5
    v_and_b32 v13, 15, v1
    v_add_u32 v13, s59, v13
    v_cmp_gt_u32 vcc, 16, v1
    s_lshl_b32 s54, s{sH}, 17
    s_lshl_b32 s58, s56, 11
    v_cndmask_b32 v12, v13, v12, vcc
    v_lshlrev_b32 v12, 7, v12
    v_add_u32 v9, {FA_BASE}, v12
    s_add_u32 s54, s54, s58
    s_add_u32 s54, s54, {QF_BASE}
    s_lshl_b32 s55, s{sH}, 18
    s_and_b32 s58, s56, 31
    s_lshl_b32 s58, s58, 12
    s_add_u32 s55, s55, s58
    s_add_u32 s55, s55, {KV_BASE}
    v_mov_b32 v8, 0
    """)
    b_setup()
    tokld = f"buffer_load_dwordx2 v[10:11], v8, s[{SDBG}:{SDBG+3}], 0 offen sc1"
    a(f"s_cmp_eq_u32 s{sTY}, 2\ns_cbranch_scc1 L_A_lidle")
    for i in range(5):
        a(f"s_waitcnt vmcnt({7 if i < 2 else 6})\ns_barrier")
        issue_chunk(i + 2)
    a(f"""
    {tokld}
    s_cmp_eq_u32 s{sTY}, 1
    s_cbranch_scc1 L_A_lkv
    s_waitcnt vmcnt(7)
    s_barrier
    s_waitcnt vmcnt(0)
    s_barrier
    s_branch L_A_ldone
    """)
    a.label("L_A_lkv")
    a(f"s_add_u32 s70, s70, {1024*896}\ns_waitcnt vmcnt(7)\ns_barrier")
    for p in range(XE):
        xpair(L_X2 + 8192*p); a(adv())
    a(f"s_waitcnt vmcnt({2*XE})\ns_barrier")
    a(f"s_waitcnt vmcnt(0)\ns_barrier")
    for p in range(XE, 7):
        xpair(L_X2 + 8192*p); a(adv())
    a("s_waitcnt vmcnt(0)\ns_barrier\ns_branch L_A_ldone")
    a.label("L_A_lidle")
    a(f"{tokld}\ns_waitcnt vmcnt(0)")
    a.label("L_A_ldone")
    tok_check("L_tok", 10, 8, "s3")
    a(f"v_readfirstlane_b32 s{sTOK}, v10")
    QT = 16
    poll(a, "L_pollQ", "L_pollQ_done", "v9", cnt="s49", mask="15")
    a(f"""
    buffer_load_dwordx4 {vr(KK,4)}, v1, s[{SWS}:{SWS+3}], s55 offen sc1
    buffer_load_dwordx4 {vr(KK+4,4)}, v1, s[{SWS}:{SWS+3}], s55 offen offset:1024 sc1
    buffer_load_dwordx4 {vr(QT,4)}, v1, s[{SWS}:{SWS+3}], s54 offen sc1
    buffer_load_dwordx4 {vr(QT+4,4)}, v1, s[{SWS}:{SWS+3}], s54 offen offset:1024 sc1
    """)
    poll(a, "L_pollA", "L_pollA_done", "v9", cnt="s49", mask="0xffff0000")
    a("s_branch L_B1")
    a.label("L_A_cons")
    a("s_waitcnt lgkmcnt(0)")
    common_setup()
    a(f"""
    s_cmp_lg_u32 s2, 0
    s_cbranch_scc1 L_notok
    s_cmp_lg_u32 s{sU}, 3
    s_cbranch_scc1 L_notok
    s_memrealtime s[56:57]
    s_waitcnt lgkmcnt(0)
    s_or_b32 s56, s56, 1
    v_mov_b32 v8, 0
    v_mov_b32 v10, s56
    v_mov_b32 v11, s57
    s_mov_b64 exec, 1
    buffer_store_dwordx2 v[10:11], v8, s[{SDBG}:{SDBG+3}], 0 offen sc1
    s_mov_b64 exec, -1
    """)
    a.label("L_notok")
    TK = 60; ZR = 62; FLG = 63
    a(f"""
    v_mov_b32 v{ZR}, 0
    s_cmp_eq_u32 s{sTY}, 2
    s_cbranch_scc1 L_A_idle
    v_and_b32 v10, 31, v1
    v_lshrrev_b32 v11, 5, v1
    v_lshrrev_b32 v12, 3, v10
    v_and_b32 v13, 7, v10
    v_lshrrev_b32 v14, 1, v13
    v_and_b32 v15, 1, v12
    v_lshl_or_b32 v14, v15, 2, v14
    v_xor_b32 v14, v14, v11
    v_lshlrev_b32 v12, 10, v12
    v_lshl_add_u32 v12, v13, 7, v12
    """)
    for ks in range(4):
        a(f"v_xor_b32 v15, {2*ks}, v14\nv_lshl_add_u32 v{5+ks}, v15, 4, v12")
    a(f"""
    v_bfe_u32 v10, v1, 4, 1
    v_bfe_u32 v12, v1, 2, 2
    v_bfe_u32 v13, v1, 1, 1
    v_lshl_add_u32 v13, v10, 1, v13
    s_lshl_b32 s56, s{sU}, 2
    v_add_u32 v13, s56, v13
    v_lshlrev_b32 v14, 2, v12
    v_xor_b32 v13, v13, v14
    v_lshlrev_b32 v13, 4, v13
    v_lshl_add_u32 v13, v12, 8, v13
    v_lshl_add_u32 v13, v11, 11, v13
    v_and_b32 v14, 1, v1
    v_lshl_add_u32 v9, v14, 3, v13
    v_add_u32 v9, 8192, v9
    s_add_u32 s42, s{sT0}, s{sU}
    s_lshl_b32 s56, s42, 5
    s_add_u32 s56, s56, s{sRB}
    s_lshl_b32 s56, s56, 7
    s_add_u32 s56, s56, {FA_BASE}
    s_add_u32 s57, s56, {16*128}
    s_cmp_eq_u32 s{sTY}, 1
    s_cselect_b32 s{sF2}, s57, {DROP}
    s_cselect_b32 s57, 42, 14
    s_cmp_ge_u32 s42, s57
    s_cselect_b32 s56, {DROP}, s56
    s_cselect_b32 s61, {DROP}, 0
    v_mov_b32 v{FLG}, s56
    s_cmp_ge_u32 s42, 28
    s_cbranch_scc1 L_A_vpath
    """)
    ACC = 80; FS = 16; PK = 40; AD = 64; TQ = 66
    SO = [50, 53]; MK = [54, 64]
    def mf(vorient, acc, x, w, c):
        return f"v_mfma_f32_32x32x16_bf16 {acc}, {x}, {w}, {c}" if vorient else f"v_mfma_f32_32x32x16_bf16 {acc}, {w}, {x}, {c}"
    def flag1(P):
        a("s_waitcnt vmcnt(0)")
        tok_check(f"{P}_tok", TK, ZR, "s3")
        a(f"""
        s_mov_b64 exec, 1
        buffer_store_dwordx2 v[{TK}:{TK+1}], v{FLG}, s[{SWS}:{SWS+3}], 0 offen sc1
        s_mov_b64 exec, -1
        v_readfirstlane_b32 s{sTOK}, v{TK}
        """)
    def phaseA(vorient, pieces, P):
        def R(st):
            ks = st % 4; b = FS + 8 * (st % 3)
            return [f"ds_read_b64_tr_b16 {ar(4*st,2)}, v14 offset:{ks*4096}",
                    f"ds_read_b64_tr_b16 {ar(4*st+2,2)}, v14 offset:{ks*4096+1024}",
                    f"ds_read_b128 {vr(b,4)}, v{10+ks}",
                    f"ds_read_b128 {vr(b+4,4)}, v{10+ks} offset:4096"]
        def R2(st):
            ks = st % 4; b = FS + 8 * (st % 3); o = (st // 4) * 8192
            return [f"ds_read_b128 {vr(b,4)}, v{10+ks} offset:{o}", f"ds_read_b128 {vr(b+4,4)}, v{10+ks} offset:{o+4096}"]
        def MR(st, n, r, nb=3, extra=()):
            a(f"s_waitcnt lgkmcnt({n})")
            b = FS + 8 * (st % nb); h = len(r) // 2; e = len(extra) // 2
            for mt in range(2):
                acc = vr(ACC+16*mt, 16)
                a(mf(vorient, acc, vr(b+4*mt, 4), ar(4*st, 4), "0" if st == 0 else acc))
                [a(x) for x in r[h*mt:h*mt+h]]
                [a(x) for x in extra[e*mt:e*mt+e]]
        for i in range(7):
            for ks in range(4): a(f"v_add_u32 v{10+ks}, {(i % 4)*A_SLOT}, v{5+ks}")
            a(f"v_add_u32 v14, {(i % 4)*A_SLOT}, v9")
            a("s_barrier")
            if i == 0: a.comment("MID0")
            if i == 6: a(f"buffer_load_dwordx2 v[{TK}:{TK+1}], v{ZR}, s[{SDBG}:{SDBG+3}], 0 offen sc1")
            s0 = 4 * i
            [a(x) for x in R(s0)]
            if i: MR(s0-1, 4, R(s0+1))
            else: [a(x) for x in R(s0+1)]
            MR(s0, 4, R(s0+2)); MR(s0+1, 4, R(s0+3)); MR(s0+2, 4, [])
        MR(27, 0, [])
        a("s_nop 7\ns_nop 2")
        for mt in range(2):
            for p in pieces(mt): a(p)
        a(f"s_cmp_eq_u32 s{sTY}, 0\ns_cbranch_scc1 L_A_qdone\ns_barrier")
        for ks in range(4): a(f"v_add_u32 v{10+ks}, {L_X2}, v{5+ks}")
        a(f"s_add_u32 s{SO[0]}, s{SO[0]}, {32*4096}\ns_add_u32 s{SO[1]}, s{SO[1]}, {32*4096}")
        vpad_const()
        def pads(st):
            q = st - 1
            return [f"v_accvgpr_write_b32 a{4*q+r}, v78" for r in range(4)] if q >= 0 and (q % 4) >= 2 else []
        def run(sts):
            [a(x) for x in R2(sts[0]) + R2(sts[1])]
            for k, st in enumerate(sts):
                MR(st, 2 if k + 1 < len(sts) else 0, R2(sts[k+2]) if k + 2 < len(sts) else [], extra=pads(st))
        run(list(range(0, 4*XE)))
        flag1(P)
        a("s_barrier")
        run(list(range(4*XE, 28)))
        for r in list(range(108, 112)) + list(range(120, 128)): a(f"v_accvgpr_write_b32 a{r}, v78")
        for mt in range(2):
            for p in pieces(mt): a(p)
    a(f"""
    s_cmp_ge_u32 s42, 14
    s_cselect_b32 s43, 14, 0
    s_cselect_b32 s70, {f32bits(1.0)}, {f32bits(QSCALE)}
    s_cselect_b32 s71, {f32bits(1.0)}, {f32bits(QSCALE)}
    s_cselect_b32 s58, {KV_BASE}, {QF_BASE}
    s_cselect_b32 s57, 18, 17
    s_cselect_b32 s56, 13, 12
    s_sub_u32 s42, s42, s43
    s_lshl_b32 s42, s42, 2
    s_lshl_b32 s43, s{sRB}, s56
    s_add_u32 s58, s58, s43
    s_add_u32 s{SO[0]}, s58, s61
    s_sub_u32 s56, s56, 1
    s_lshl_b32 s56, 1, s56
    s_add_u32 s{SO[1]}, s{SO[0]}, s56
    s_lshl_b32 s67, 1, s57
    v_and_b32 v10, 31, v1
    v_lshlrev_b32 v10, 4, v10
    """)
    for sg in range(2):
        a(f"""
        v_add_u32 v12, s42, v11
        v_add_u32 v12, {2*sg}, v12
        v_mul_u32_u24 v13, 147, v12
        v_lshrrev_b32 v13, 10, v13
        v_mul_u32_u24 v14, 7, v13
        v_sub_u32 v12, v12, v14
        v_lshrrev_b32 v14, 2, v12
        v_lshl_add_u32 v13, v13, 1, v14
        v_lshlrev_b32 v13, s57, v13
        v_add_u32 v13, v13, v10
        v_and_b32 v14, 3, v12
        v_lshl_add_u32 v{AD+sg}, v14, 9, v13
        v_cmp_eq_u32 s[{MK[sg]}:{MK[sg]+1}], 3, v12
        """)
    for q in range(2):
        a(f"v_mov_b32 v{TQ+4*q+2}, 0x3f803f80\nv_mov_b32 v{TQ+4*q+3}, 0x00003f80")
    b_setup_s()
    def qk_pieces(mt):
        L = []
        for sg in range(2):
            D = PK + 8*mt + 4*sg
            b0 = ACC + 16*mt + 8*sg
            L.append("\n".join(f"v_pk_mul_f32 {vr(b0+2*r,2)}, {vr(b0+2*r,2)}, s[70:71]" for r in range(4)))
            L.append("\n".join(f"v_cvt_pk_bf16_f32 v{D+r}, v{b0+2*r}, v{b0+2*r+1}" for r in range(4)) + f"\ns_add_u32 s3, s{SO[mt]}, s67\ns_nop 0")
            L.append(f"""v_permlane32_swap_b32 v{D}, v{D+2}
            v_permlane32_swap_b32 v{D+1}, v{D+3}
            s_mov_b64 exec, s[{MK[sg]}:{MK[sg]+1}]
            v_mov_b32 v{TQ+4*mt}, v{D+2}
            v_mov_b32 v{TQ+4*mt+1}, v{D+3}
            v_mov_b32 v{D+2}, v{TQ+4*mt+2}
            v_mov_b32 v{D+3}, v{TQ+4*mt+3}
            buffer_store_dwordx4 {vr(TQ+4*mt,4)}, v{AD+sg}, s[{SWS}:{SWS+3}], s3 offen sc1
            s_mov_b64 exec, -1
            buffer_store_dwordx4 {vr(D,4)}, v{AD+sg}, s[{SWS}:{SWS+3}], s{SO[mt]} offen sc1""")
        return L
    phaseA(False, qk_pieces, "L_Ak")
    a("s_branch L_A_cdone")
    a.label("L_A_vpath")
    a(f"""
    s_lshl_b32 s58, s{sRB}, 13
    s_add_u32 s{SO[0]}, s58, {KV_BASE + 2048}
    s_add_u32 s{SO[1]}, s{SO[0]}, 4096
    s_sub_u32 s42, s42, 28
    s_lshl_b32 s42, s42, 5
    v_and_b32 v10, 31, v1
    v_add_u32 v10, s42, v10
    v_mul_u32_u24 v12, 293, v10
    v_lshrrev_b32 v12, 13, v12
    v_mul_u32_u24 v13, 28, v12
    v_sub_u32 v10, v10, v13
    v_lshlrev_b32 v12, 18, v12
    v_lshl_add_u32 v12, v10, 4, v12
    v_lshl_add_u32 v{AD}, v11, 9, v12
    """)
    b_setup_s()
    def v_pieces(mt):
        L = []
        for f in range(2):
            D = PK + 8*mt + 4*f
            L.append("\n".join(f"v_cvt_pk_bf16_f32 v{D+r}, v{ACC+16*mt+8*f+2*r}, v{ACC+16*mt+8*f+2*r+1}" for r in range(4)) +
                     f"\nbuffer_store_dwordx4 {vr(D,4)}, v{AD}, s[{SWS}:{SWS+3}], s{SO[mt]} offen offset:{f*1024} sc1")
        return L
    phaseA(True, v_pieces, "L_Av")
    a("s_branch L_A_cdone")
    a.label("L_A_idle")
    a(f"v_mov_b32 v{FLG}, {DROP}\nbuffer_load_dwordx2 v[{TK}:{TK+1}], v{ZR}, s[{SDBG}:{SDBG+3}], 0 offen sc1")
    b_setup_s()
    a.label("L_A_qdone")
    vpad_init()
    flag1("L_Aq")
    a.label("L_A_cdone")
    b_setup_v()
    if F2E == 1:
        a(f"""
        s_waitcnt vmcnt(0)
        s_mov_b64 exec, 1
        buffer_store_dword v{TK}, v1, s[{SWS}:{SWS+3}], s{sF2} offen sc1
        s_mov_b64 exec, -1
        """)
    a.label("L_B1")
    a("s_barrier")
    nload = [0]; loadidx = {}
    def load(dst, soff, imm, tag=None):
        a(f"buffer_load_dwordx4 {dst}, v1, s[{SWS}:{SWS+3}], {soff} offen offset:{imm} sc1")
        nload[0] += 1
        if tag: loadidx[tag] = nload[0]
    def slot_lines(i):
        return [("load", ar(16*i, 4), f"s{56+i}", 0, None), ("load", ar(16*i+4, 4), f"s{56+i}", 1024, f"k{i}"), ("vload", i)]
    def emit_item(x):
        if x[0] == "load": load(x[1], x[2], x[3], x[4])
        elif x[0] == "vload":
            i = x[1]
            a(f"s_mov_b64 exec, s[{sVM}:{sVM+1}]")
            load(ar(16*i+8, 4), f"s{56+i}", 2048, None); load(ar(16*i+12, 4), f"s{56+i}", 3072, f"v{i}")
            a("s_mov_b64 exec, -1")
    for x in slot_lines(0): emit_item(x)
    a(f"""
    s_cmp_eq_u32 s{sG}, 0
    s_cbranch_scc1 L_B2
    s_waitcnt vmcnt(4)
    s_mov_b64 exec, s[{sHI}:{sHI+1}]
    v_mov_b32 v{QT+6}, 0
    v_mov_b32 v{QT+7}, 0
    s_mov_b64 exec, -1
    s_nop 0
    v_mfma_f32_32x32x16_bf16 {vr(S0,16)}, {vr(KK,4)}, {vr(QT,4)}, 0
    v_mfma_f32_32x32x16_bf16 {vr(S0,16)}, {vr(KK+4,4)}, {vr(QT+4,4)}, {vr(S0,16)}
    ds_write_b128 v{O0}, {vr(QT,4)}
    s_nop 11
    v_cvt_pk_bf16_f32 v{S0+1}, -v{S0}, -v{S0}
    v_lshlrev_b32 v{S0+1}, 16, v{S0+1}
    v_sub_f32 v{S0+1}, -v{S0}, v{S0+1}
    s_mov_b64 exec, s[{sHI}:{sHI+1}]
    v_cvt_pk_bf16_f32 v{QT+6}, -v{S0}, v{S0+1}
    s_mov_b64 exec, -1
    ds_write_b128 v{O0}, {vr(QT+4,4)} offset:1024
    s_waitcnt lgkmcnt(0)
    s_barrier
    """)
    def qreads():
        for s_ in range(4):
            a(f"ds_read_b128 {vr(Q0+8*s_,4)}, v{O0+s_}\nds_read_b128 {vr(Q0+8*s_+4,4)}, v{O0+s_} offset:1024")
    qreads()
    save = (nload[0], dict(loadidx))
    for i in range(1, PRE):
        for x in slot_lines(i): emit_item(x)
    a("s_branch L_B3")
    a.label("L_B2")
    if F2E == 2:
        a(f"""
        s_waitcnt vmcnt(4)
        s_mov_b64 exec, 1
        buffer_store_dword v60, v1, s[{SWS}:{SWS+3}], s{sF2} offen sc1
        s_mov_b64 exec, -1
        """)
    nload[0] = save[0]; loadidx.clear(); loadidx.update(save[1])
    for i in range(1, PRE):
        for x in slot_lines(i): emit_item(x)
    a("s_barrier")
    qreads()
    a.label("L_B3")
    a("s_waitcnt lgkmcnt(0)")
    sc = Sched(a)
    def vmwait(tag): return f"s_waitcnt vmcnt({nload[0] - loadidx[tag]})"
    stream = []
    def Sb(t): return S0 + 16 * (t & 1)
    def Ex(t, r): return (f"v_exp_f32 v{Sb(t)+r}, v{Sb(t)+r}", 8, f"E{t}_{r}", [(f"QKb{t}", 13)])
    def Cv(t, c): return (f"v_cvt_pk_bf16_f32 v{P0+8*(t%NP)+c}, v{Sb(t)+2*c}, v{Sb(t)+2*c+1}", 4, f"C{t}_{c}",
                          [(f"E{t}_{2*c+1}", 1)] + ([(f"PV{'a' if c < 4 else 'b'}{t-NP}", 0)] if t >= NP else []))
    prios = {0: {}, 1: {0: 3, 9: 2, 14: 1, 17: 0, 19: 3, 22: 2, 24: 1, 26: 0, 27: 3, 29: 2, 30: 1, 31: 0},
             2: {0: 3, 2: 2, 6: 1, 14: 0, 19: 3, 22: 2, 24: 1, 26: 0, 27: 3, 29: 2, 30: 1, 31: 0},
             3: {0: 3, 4: 2, 10: 1, 16: 0, 19: 3, 22: 2, 24: 1, 26: 0, 27: 3, 29: 2, 30: 1, 31: 0}}
    prio_at = prios[PRIO]
    for t in range(NT + 1):
        if t in prio_at: stream.append((f"s_setprio {prio_at[t]}", 4, None, []))
        for g in range(4):
            cs = [(t-1, 6), (t-1, 7)] if g == 0 else [(t, 2*g-2), (t, 2*g-1)]
            for (tt, c) in cs:
                if 0 <= tt < NT: stream.append(Cv(tt, c))
            if t < NT:
                for r in range(4*g, 4*g+4): stream.append(Ex(t, r))
    qk = []; pv = []; seen = set()
    for t in range(NT):
        qs, ks = qslot(t), kslot(t)
        sb = vr(Sb(t), 16)
        deps = [(f"C{t-2}_7", 0)] if t >= 2 else []
        pre = []; prev = []
        if ks not in seen:
            seen.add(ks); pre = [("vm", f"k{ks}")]; prev = [("vm", f"v{ks}")]
        qk.append((pre, f"v_mfma_f32_32x32x16_bf16 {sb}, {ar(16*ks,4)}, {vr(Q0+8*qs,4)}, 0", f"QKa{t}", deps))
        qk.append(([], f"v_mfma_f32_32x32x16_bf16 {sb}, {ar(16*ks+4,4)}, {vr(Q0+8*qs+4,4)}, {sb}", f"QKb{t}", [(f"QKa{t}", 0)]))
        Ob = vr(oacct(t), 16)
        d = {16: [("WA_3", 2)], 20: [("P1in", 0)], 24: [("P2in", 0)], 28: [("P3in", 0)]}.get(t, [])
        cin = "0" if t in (0, 1, 16) else Ob
        pv.append((prev, f"v_mfma_f32_32x32x16_bf16 {Ob}, {ar(16*ks+8,4)}, {vr(P0+8*(t%NP),4)}, {cin}", f"PVa{t}", [(f"C{t}_3", 2)] + d))
        pv.append(([], f"v_mfma_f32_32x32x16_bf16 {Ob}, {ar(16*ks+12,4)}, {vr(P0+8*(t%NP)+4,4)}, {Ob}", f"PVb{t}", [(f"C{t}_7", 2)]))
    side = []
    def S(text, name=None, deps=(), cost=4): side.append((text, cost, name, list(deps)))
    if not F2E:
        S(("raw", f"v_mov_b32 v{P0+23}, s{sTOK}\ns_mov_b64 exec, 1\nbuffer_store_dword v{P0+23}, v1, s[{SWS}:{SWS+3}], s{sF2} offen sc1\ns_mov_b64 exec, -1", None), deps=[("QKa0", 0)])
    for i in range(PRE, 8):
        first = True
        if i == 4:
            S(("raw", f"s_mov_b64 exec, 0xff\nbuffer_load_dword a64, v{V_T}, s[{SWS}:{SWS+3}], 0 offen sc1\ns_mov_b64 exec, -1", "lf"), deps=[(f"E{LF0}_0", 0)])
            S(("late",), deps=[(f"E{LF1}_0", 0)])
        for x in slot_lines(i):
            S(x, deps=[(f"QKa{2*max(i-PFD,0)}", 0)] if first else []); first = False
    def wo_dma(per):
        return (f"s_add_u32 m0, s51, {7168*per}\ns_add_u32 s49, s52, {32*896*per}\n"
                f"buffer_load_dwordx4 v{V_WO}, s[{SWO}:{SWO+3}], s49 offen lds")
    wa = ["E15_8", "E15_12", "E16_0", "E16_4"] if WSP else [None]*4
    wb = ["E16_10", "E17_0", "E17_6", "E17_12"] if WSP else [None]*4
    wc = ["E25_6", "E25_12", "E26_2", "E26_7"] if WSP else [None]*4
    def dp(x): return [(x, 0)] if x else []
    for g in range(4):
        S(f"ds_write_b128 v{V_WA}, {vr(O0+4*g,4)} offset:{1024*g}", deps=[("PVb14", 14)] + dp(wa[g]), cost=8, name=f"WA_{g}")
    for g in range(4):
        S(f"ds_write_b128 v{V_WB}, {vr(O0+16+4*g,4)} offset:{1024*g}", deps=[("PVb15", 14)] + dp(wb[g]), cost=8, name=f"WB_{g}")
    S(f"s_lshl_b32 s49, s{sH}, 7\ns_add_u32 s49, s49, s{sFR}\ns_cmp_eq_u32 s{sWV}, 4\ns_cselect_b32 s49, s49, {DROP}\nv_mov_b32 v{V_T}, s{sTOK}\n"
      f"s_mov_b64 exec, 1\nbuffer_store_dword v{V_T}, v1, s[{SWS}:{SWS+3}], s49 offen sc1\ns_mov_b64 exec, -1", cost=32)
    S("s_waitcnt lgkmcnt(0)\ns_barrier", deps=[(f"E18_{XB1}", 0)], cost=8)
    for g in range(4):
        S(f"ds_read_b128 {vr(O0+16+4*g,4)}, v{V_RC} offset:{1024*g}", cost=8)
    for per in range(1, 4): S(wo_dma(per), deps=[(f"E19_{5*(per-1)}", 0)], cost=12)
    S("s_waitcnt lgkmcnt(0)", deps=[("E20_4", 0)], name="P1in")
    for per in range(4, 14): S(wo_dma(per), deps=[(f"E{20 + (per-3)//3}_{5*((per-3)%3)+2}", 0)], cost=12)
    for r in range(8):
        S(f"v_pk_add_f32 {vr(O0+2*r,2)}, {vr(O0+2*r,2)}, {vr(O0+16+2*r,2)}", deps=[("PVb23", 14)])
    for g in range(4):
        S(f"ds_read_b128 {vr(O0+16+4*g,4)}, v{V_RD} offset:{L_X1B+1024*g}", cost=8, name=f"R2_{g}")
    S(f"ds_write_b128 v{V_RC}, {vr(O0,4)}", cost=8, deps=dp(wc[0]))
    S("s_waitcnt lgkmcnt(1)", deps=[("R2_3", 12)], name="P2in")
    for g in range(1, 4):
        S(f"ds_write_b128 v{V_RC}, {vr(O0+4*g,4)} offset:{1024*g}", cost=8, deps=dp(wc[g]))
    S("s_waitcnt lgkmcnt(0)\ns_barrier", deps=[(f"E26_{XB2}", 0)], cost=8)
    for g in range(4):
        S(f"ds_read_b128 {vr(O0+4*g,4)}, v{V_RD} offset:{1024*g}", cost=8)
    S(wo_dma(0), cost=12)
    S("s_waitcnt lgkmcnt(0)", deps=[("E28_4", 0)], name="P3in")
    S(f"s_lshl_b32 s50, s{sWV}, 8\ns_add_u32 s50, s50, s{sFR}\ns_mov_b64 exec, 0x101\nbuffer_load_dword v{V_T}, v1, s[{SWS}:{SWS+3}], s50 offen sc1\ns_mov_b64 exec, -1",
      deps=[("E29_0", 0)], cost=20)
    S(f"s_waitcnt vmcnt(0)\ns_mov_b64 exec, 0x101\nv_cmp_ne_u32 s[70:71], s{sTOK}, v{V_T}\ns_mov_b64 exec, -1", deps=[("E31_8", 0)], cost=16)

    def do_text(x, cost, name=None):
        if isinstance(x, tuple):
            if x[0] == "vm": sc.emit(vmwait(x[1]), 4, name)
            elif x[0] == "raw":
                for l in x[1].split("\n"):
                    sc.emit(l, 4)
                    if l.startswith("buffer_"):
                        nload[0] += 1
                        if x[2]: loadidx[x[2]] = nload[0]
            elif x[0] == "late":
                a(f"""
                {vmwait("lf")}
                s_mov_b64 exec, 0xff
                v_accvgpr_write_b32 a65, v{V_T}
                v_accvgpr_read_b32 v{V_T}, a64
                s_mov_b32 s49, 0
                v_cmp_ne_u32 vcc, s{sTOK}, v{V_T}
                s_cbranch_vccz L_late_ok
                """)
                a.label("L_late")
                a(f"""
                v_accvgpr_read_b32 v{V_T}, a65
                s_add_u32 s49, s49, 1
                buffer_load_dword v{V_T}, v{V_T}, s[{SWS}:{SWS+3}], 0 offen sc1
                s_waitcnt vmcnt(0)
                v_cmp_ne_u32 vcc, s{sTOK}, v{V_T}
                s_cmp_gt_u32 s49, {POLL_MAX}
                s_cbranch_scc1 L_late_ok
                s_cbranch_vccnz L_late
                """)
                a.label("L_late_ok")
                a("s_mov_b64 exec, -1")
                sc.n += 8; sc.t += 32
            else:
                emit_item(x); k = 1 if x[0] == "load" else 4
                sc.n += k; sc.t += 4 * k
        else:
            ls = x.split("\n")
            for l in ls: sc.emit(l, cost // len(ls))
            if name: sc.done[name] = sc.n - 1
    def try_mfma():
        if sc.t < sc.mfree: return False
        for q in (qk, pv):
            if q and sc.ready(q[0][3]):
                pre, text, nm, _ = q.pop(0)
                for p in pre: do_text(p, 4)
                backlog = len(pv) - len(qk) > 5 or not qk
                sc.mfree = sc.t + (32 if backlog or sc.n < 8 else SPC)
                sc.emit(text, 8, nm)
                return True
        return False
    def try_side():
        if side and sc.ready(side[0][3]):
            text, cost, nm, _ = side.pop(0)
            do_text(text, cost, nm)
            return True
        return False
    bmid = {f"E{t}_0": i for i, t in enumerate([0, 2, 4, 8, 12, 16, 20, 24, 28, 31])}
    nops = 0; si = 0
    while si < len(stream) or qk or pv or side:
        p1 = try_mfma(); p2 = try_side()
        if si < len(stream):
            text, cost, nm, deps = stream[si]
            if sc.ready(deps):
                sc.emit(text, cost, nm); si += 1
                if nm in bmid: a.comment(f"BMID{bmid[nm]}")
                continue
        if not (p1 or p2):
            sc.emit("s_nop 0", 4); nops += 1
    print(f"phase B schedule: est cycles {sc.t}, instrs {sc.n}, nops {nops}")
    OF = O0; T0 = S0; H = S0 + 16
    a(f"""
    v_xor_b32 v{V_T}, 16384, v{V_RD}
    v_lshrrev_b32 v{V_WA}, 2, v1
    v_sub_u32 v{V_WA}, v{V_WA}, v1
    v_add_u32 v{V_WB}, v{V_WA}, v{V_T}
    v_add_u32 v{V_WA}, v{V_WA}, v{V_RD}
    s_lshr_b32 s58, s{sH}, 2
    s_lshl_b32 s59, s{sJ}, 2
    s_add_u32 s53, s58, s59
    s_lshl_b32 s59, s53, 15
    s_lshl_b32 s60, s{sWV}, 12
    s_add_u32 s59, s59, s60
    s_add_u32 s54, s59, {OF_BASE}
    v_mov_b32 v{T0+5}, 0x71800000
    v_mov_b32 v{T0+6}, 0x30800000
    """)
    a.comment("MID6"); a.comment("CMID0")
    a(f"s_cmp_lg_u32 s{sG}, 0\ns_cbranch_scc1 L_g1")
    for r in range(4, 8): a(f"v_pk_add_f32 {vr(OF+2*r,2)}, {vr(OF+2*r,2)}, {vr(OF+16+2*r,2)}")
    a(f"ds_write_b128 v{V_RD}, {vr(OF+8,4)}\nds_write_b128 v{V_RD}, {vr(OF+12,4)} offset:1024")
    for r in range(4): a(f"v_pk_add_f32 {vr(OF+2*r,2)}, {vr(OF+2*r,2)}, {vr(OF+16+2*r,2)}")
    a(f"""
    s_waitcnt lgkmcnt(0)
    s_barrier
    ds_read_b32 v{H+8}, v{V_WB} offset:2048
    ds_read_b128 {vr(H,4)}, v{V_T}
    ds_read_b128 {vr(H+4,4)}, v{V_T} offset:1024
    s_waitcnt lgkmcnt(2)
    v_add_f32 v{T0}, v{OF+12}, v{H+8}
    s_waitcnt lgkmcnt(0)
    """)
    for r in range(4): a(f"v_pk_add_f32 {vr(H+2*r,2)}, {vr(H+2*r,2)}, {vr(OF+2*r,2)}")
    a("s_branch L_fin")
    a.label("L_g1")
    for r in (0, 1, 2, 3, 6): a(f"v_pk_add_f32 {vr(OF+2*r,2)}, {vr(OF+2*r,2)}, {vr(OF+16+2*r,2)}")
    a(f"""
    ds_write_b128 v{V_RD}, {vr(OF,4)}
    ds_write_b128 v{V_RD}, {vr(OF+4,4)} offset:1024
    ds_write_b32 v{V_WA}, v{OF+12} offset:2048
    """)
    for r in (4, 5, 7): a(f"v_pk_add_f32 {vr(OF+2*r,2)}, {vr(OF+2*r,2)}, {vr(OF+16+2*r,2)}")
    a(f"""
    s_waitcnt lgkmcnt(0)
    s_barrier
    ds_read_b128 {vr(H+4,4)}, v{V_T} offset:1024
    ds_read_b128 {vr(H,4)}, v{V_T}
    s_waitcnt lgkmcnt(1)
    v_add_f32 v{T0}, v{OF+12}, v{H+4}
    s_waitcnt lgkmcnt(0)
    """)
    for r in range(4): a(f"v_pk_add_f32 {vr(H+2*r,2)}, {vr(H+2*r,2)}, {vr(OF+8+2*r,2)}")
    a.label("L_fin")
    a(f"""
    v_mov_b32 v{T0+1}, v{T0}
    v_max3_f32 v{T0+3}, |v{H}|, |v{H+1}|, |v{H+2}|
    v_max3_f32 v{T0+3}, |v{H+3}|, |v{H+4}|, v{T0+3}
    v_permlane32_swap_b32 v{T0}, v{T0+1}
    v_max3_f32 v{T0+3}, |v{H+5}|, |v{H+6}|, v{T0+3}
    v_max_f32 v{T0+3}, |v{H+7}|, v{T0+3}
    v_rcp_f32 v{T0+2}, v{T0+1}
    v_pk_add_f32 {vr(T0+8,2)}, {vr(H,2)}, {vr(H+2,2)}
    v_pk_add_f32 {vr(T0+10,2)}, {vr(H+4,2)}, {vr(H+6,2)}
    v_pk_add_f32 {vr(T0+8,2)}, {vr(T0+8,2)}, {vr(T0+10,2)}
    v_cmp_lt_f32 vcc, v{T0+1}, v{T0+5}
    v_cmp_gt_f32 s[58:59], v{T0+1}, v{T0+6}
    v_cmp_lt_f32 s[60:61], v{T0+3}, v{T0+5}
    v_cmp_o_f32 s[62:63], v{T0+8}, v{T0+9}
    s_and_b64 s[58:59], s[58:59], vcc
    s_and_b64 s[60:61], s[60:61], s[62:63]
    s_and_b64 s[58:59], s[58:59], s[60:61]
    s_cmp_eq_u64 s[58:59], -1
    s_cbranch_scc0 L_slow
    """)
    a.label("L_store")
    for r in range(8): a(f"v_mul_f32 v{H+r}, v{H+r}, v{T0+2}")
    for r in range(4): a(f"v_cvt_pk_bf16_f32 v{P0+r}, v{H+2*r}, v{H+2*r+1}")
    for r in range(4): a(f"v_min_u32 v{P0+r}, 0xfffffffe, v{P0+r}")
    a(f"""
    s_cmp_eq_u32 s{sG}, 0
    s_cbranch_scc1 L_st
    s_mov_b64 exec, s[{sHI}:{sHI+1}]
    v_mov_b32 v{P0+2}, 0
    v_mov_b32 v{P0+3}, 0
    s_mov_b64 exec, -1
    """)
    a.label("L_st")
    LN = P0 + 7; OT = 72; L_IMG = L_RED
    def WFr(hd, ns):
        i = 2*hd + ns
        return (vr, 8 + 4*i) if i < 16 else (ar, 64 + 4*(i-16))
    a(f"buffer_store_dwordx4 {vr(P0,4)}, v1, s[{SWS}:{SWS+3}], s{sOA} offen sc1")
    a(f"""
    v_lshrrev_b32 v{LN}, 4, v1
    v_bfe_u32 v2, v{LN}, 2, 2
    v_bfe_u32 v3, v{LN}, 4, 1
    v_lshl_add_u32 v2, v3, 2, v2
    v_lshrrev_b32 v3, 5, v{LN}
    v_lshl_add_u32 v2, v3, 4, v2
    v_mul_u32_u24 v2, 224, v2
    v_and_b32 v3, 3, v{LN}
    v_lshl_add_u32 v2, v3, 3, v2
    s_mul_i32 s60, s{sU}, 56
    s_add_u32 s60, s60, {L_WO}
    v_add_u32 v2, s60, v2
    v_add_u32 v6, {8*28*224}, v2
    v_and_b32 v3, 15, v{LN}
    v_lshrrev_b32 v4, 4, v{LN}
    v_lshlrev_b32 v4, 9, v4
    v_lshl_add_u32 v3, v3, 4, v4
    s_lshl_b32 s60, s{sG}, 8
    s_add_u32 s60, s60, {L_OST}
    v_add_u32 v3, s60, v3
    s_lshl_b32 s60, s{sWV}, 12
    s_add_u32 s60, s60, {L_OST}
    v_add_u32 v7, s60, v1
    v_and_b32 v{P0+9}, 3, v{LN}
    v_lshlrev_b32 v{P0+9}, 10, v{P0+9}
    v_add_u32 v{P0+9}, {HOFF}, v{P0+9}
    """)
    a("s_waitcnt vmcnt(1)")
    a("s_barrier")
    a.comment("MID7"); a.comment("CMID5")
    a(f"""
    s_cmp_eq_u64 s[70:71], 0
    s_cbranch_scc1 L_fr_done
    s_mov_b32 s61, 0
    s_mov_b64 exec, 0x101
    """)
    a.label("L_fr")
    a(f"""
    buffer_load_dword v{P0+10}, v1, s[{SWS}:{SWS+3}], s50 offen sc1
    s_add_u32 s61, s61, 1
    s_waitcnt vmcnt(0)
    v_cmp_ne_u32 vcc, s{sTOK}, v{P0+10}
    s_cmp_gt_u32 s61, {POLL_MAX}
    s_cbranch_scc1 L_fr_done
    s_cbranch_vccnz L_fr
    """)
    a.label("L_fr_done")
    a("s_mov_b64 exec, -1")
    if PFRAG:
        a("s_mov_b32 s61, 0\ns_mov_b32 s55, 15")
        for q in range(4):
            a(f"buffer_load_dwordx4 {vr(OT+4*q,4)}, v1, s[{SWS}:{SWS+3}], s54 offen offset:{1024*q} sc1")
    else:
      a(f"""
    s_mov_b32 s61, 0
    s_mov_b64 exec, 15
    buffer_load_dword v{P0+10}, v{P0+9}, s[{SWS}:{SWS+3}], s54 offen sc1
    s_mov_b64 exec, -1
    """)
    n = 0
    for hd in range(16):
        for ns in range(2):
            f_, b = WFr(hd, ns)
            base = "v2" if hd < 8 else "v6"
            off = 28*(hd % 8)*224 + 32*ns
            a(f"ds_read_b64_tr_b16 {f_(b,2)}, {base} offset:{off}")
            a(f"ds_read_b64_tr_b16 {f_(b+2,2)}, {base} offset:{off + 8*224}")
            n += 2
            if n % 8 == 0: a("s_waitcnt lgkmcnt(4)")
    a(f"""
    s_mul_i32 s60, s53, {32*896}
    s_add_u32 s60, s60, s66
    s_cmp_eq_u32 s{sWV}, 7
    s_cselect_b32 s60, {DROP}, s60
    v_and_b32 v4, 15, v{LN}
    s_lshl_b32 s62, s{sG}, 4
    v_add_u32 v4, s62, v4
    v_mul_u32_u24 v4, 224, v4
    v_lshrrev_b32 v2, 4, v{LN}
    v_lshl_add_u32 v4, v2, 3, v4
    s_mul_i32 s62, s{sU}, 56
    s_add_u32 s62, s62, {L_IMG}
    v_add_u32 v4, s62, v4
    s_lshl_b32 s62, s{sWV}, 10
    s_add_u32 s62, s62, {L_IMG}
    v_add_u32 v6, s62, v1
    s_mov_b32 s62, -1
    s_mov_b32 s63, 0x0000ffff
    """)
    if PFRAG:
        a("s_branch L_pf_chk")
        a.label("L_pf")
        for q in range(4):
            a(f"""
            s_bitcmp1_b32 s55, {q}
            s_cbranch_scc0 L_pf_s{q}
            buffer_load_dwordx4 {vr(OT+4*q,4)}, v1, s[{SWS}:{SWS+3}], s54 offen offset:{1024*q} sc1
            """)
            a.label(f"L_pf_s{q}")
        a.label("L_pf_chk")
        a("s_add_u32 s61, s61, 1\ns_mov_b32 s55, 0\ns_waitcnt vmcnt(0)")
        for q in range(4):
            a(f"""
            v_max3_u32 v{P0+8+q}, v{OT+4*q}, v{OT+4*q+1}, v{OT+4*q+2}
            v_max_u32 v{P0+8+q}, v{OT+4*q+3}, v{P0+8+q}
            """)
        for q in range(4):
            a(f"v_cmp_eq_u32 s[{56+2*(q%2)}:{57+2*(q%2)}], -1, v{P0+8+q}")
            if q % 2 == 1:
                for qq in (q-1, q):
                    a(f"s_cmp_lg_u64 s[{56+2*(qq%2)}:{57+2*(qq%2)}], 0\ns_cselect_b32 s64, {1<<qq}, 0\ns_or_b32 s55, s55, s64")
        a(f"""
        s_cmp_gt_u32 s61, {POLL_MAX}
        s_cbranch_scc1 L_pollB_done
        s_cmp_lg_u32 s55, 0
        s_cbranch_scc1 L_pf
        """)
    else:
      a(f"""
    s_mov_b64 exec, 15
    s_branch L_hint_chk
    """)
      a.label("L_hint")
      a(f"buffer_load_dword v{P0+10}, v{P0+9}, s[{SWS}:{SWS+3}], s54 offen sc1")
      a.label("L_hint_chk")
      a(f"""
    s_add_u32 s61, s61, 1
    s_waitcnt vmcnt(0)
    v_cmp_eq_u32 vcc, -1, v{P0+10}
    s_cmp_gt_u32 s61, {POLL_MAX}
    s_cbranch_scc1 L_hint_done
    s_and_b64 exec, exec, vcc
    s_cbranch_scc1 L_hint
    """)
      a.label("L_hint_done")
      a("s_mov_b64 exec, -1")
      a.label("L_pollB")
      for q in range(4):
          a(f"buffer_load_dwordx4 {vr(OT+4*q,4)}, v1, s[{SWS}:{SWS+3}], s54 offen offset:{1024*q} sc1")
      a(f"""
    s_add_u32 s61, s61, 1
    s_waitcnt vmcnt(0)
    v_max3_u32 v{P0+8}, v{OT}, v{OT+1}, v{OT+2}
    """)
      for r in range(3, 15, 2): a(f"v_max3_u32 v{P0+8}, v{OT+r}, v{OT+r+1}, v{P0+8}")
      a(f"""
    v_max_u32 v{P0+8}, v{OT+15}, v{P0+8}
    v_cmp_eq_u32 vcc, -1, v{P0+8}
    s_cmp_gt_u32 s61, {POLL_MAX}
    s_cbranch_scc1 L_pollB_done
    s_cbranch_vccnz L_pollB
    """)
    a.label("L_pollB_done")
    a.comment("MID8"); a.comment("CMID7")
    for q in range(4): a(f"ds_write_b128 v7, {vr(OT+4*q,4)} offset:{1024*q}")
    a("s_waitcnt lgkmcnt(0)\ns_barrier")
    a.comment("MID9"); a.comment("CMID8")
    AC = 88
    def MM(hd):
        for ns in range(2):
            f_, b = WFr(hd, ns)
            a(f"v_mfma_f32_16x16x32_bf16 {vr(AC+4*ns,4)}, {f_(b,4)}, {ar(4*hd,4)}, {'0' if hd == 0 else vr(AC+4*ns,4)}")
    for hd in range(16):
        a(f"ds_read_b128 {ar(4*hd,4)}, v3 offset:{hd*2048}")
        if hd >= 4:
            a("s_waitcnt lgkmcnt(4)")
            MM(hd - 4)
    for hd in range(12, 16):
        a(f"s_waitcnt lgkmcnt({15-hd})")
        MM(hd)
    a(f"""
    s_nop 6
    v_cvt_pk_bf16_f32 v{AC+8}, v{AC}, v{AC+1}
    v_cvt_pk_bf16_f32 v{AC+9}, v{AC+2}, v{AC+3}
    v_cvt_pk_bf16_f32 v{AC+10}, v{AC+4}, v{AC+5}
    v_cvt_pk_bf16_f32 v{AC+11}, v{AC+6}, v{AC+7}
    ds_write_b64 v4, {vr(AC+8,2)}
    s_mov_b64 exec, s[62:63]
    ds_write_b64 v4, {vr(AC+10,2)} offset:32
    s_mov_b64 exec, -1
    s_waitcnt lgkmcnt(0)
    s_barrier
    ds_read_b128 {vr(AC,4)}, v6
    s_waitcnt lgkmcnt(0)
    buffer_store_dwordx4 {vr(AC,4)}, v{V_WO}, s[{SOUT}:{SOUT+3}], s60 offen {OST}
    s_endpgm
    """)
    a.label("L_slow")
    Q3 = Q0 + 24; M = V_WB; M1 = V_RC; KS = Q0; E = S0 + 16
    a(f"""
    s_mov_b64 exec, s[{sHI}:{sHI+1}]
    v_mov_b32 v{Q3+6}, 0
    s_mov_b64 exec, -1
    v_mov_b32 v{M}, 0xff800000
    s_mov_b32 s58, s42
    s_mov_b32 s59, 0
    """)
    a.label("L_slow1")
    a(f"""
    buffer_load_dwordx4 {vr(KS,4)}, v1, s[{SWS}:{SWS+3}], s58 offen sc1
    buffer_load_dwordx4 {vr(KS+4,4)}, v1, s[{SWS}:{SWS+3}], s58 offen offset:1024 sc1
    s_waitcnt vmcnt(0)
    v_mfma_f32_32x32x16_bf16 {vr(S0,16)}, {vr(KS,4)}, {vr(Q3,4)}, 0
    v_mfma_f32_32x32x16_bf16 {vr(S0,16)}, {vr(KS+4,4)}, {vr(Q3+4,4)}, {vr(S0,16)}
    s_nop 15
    """)
    for r in range(0, 16, 2): a(f"v_max3_f32 v{M}, v{S0+r}, v{S0+r+1}, v{M}")
    a(f"""
    s_add_u32 s58, s58, 4096
    s_add_u32 s59, s59, 1
    s_cmp_lt_u32 s59, 64
    s_cbranch_scc1 L_slow1
    v_mov_b32 v{M1}, v{M}
    s_nop 1
    v_permlane32_swap_b32 v{M}, v{M1}
    s_nop 1
    v_max_f32 v{M}, v{M}, v{M1}
    s_mov_b32 s58, s42
    s_mov_b32 s59, 0
    """)
    for r in range(16): a(f"v_mov_b32 v{OF+r}, 0")
    a.label("L_slow2")
    a(f"""
    buffer_load_dwordx4 {vr(KS,4)}, v1, s[{SWS}:{SWS+3}], s58 offen sc1
    buffer_load_dwordx4 {vr(KS+4,4)}, v1, s[{SWS}:{SWS+3}], s58 offen offset:1024 sc1
    s_mov_b64 exec, s[{sVM}:{sVM+1}]
    buffer_load_dwordx4 {ar(8,4)}, v1, s[{SWS}:{SWS+3}], s58 offen offset:2048 sc1
    buffer_load_dwordx4 {ar(12,4)}, v1, s[{SWS}:{SWS+3}], s58 offen offset:3072 sc1
    s_mov_b64 exec, -1
    s_waitcnt vmcnt(0)
    v_mfma_f32_32x32x16_bf16 {vr(S0,16)}, {vr(KS,4)}, {vr(Q3,4)}, 0
    v_mfma_f32_32x32x16_bf16 {vr(S0,16)}, {vr(KS+4,4)}, {vr(Q3+4,4)}, {vr(S0,16)}
    s_nop 15
    """)
    for r in range(16): a(f"v_sub_f32 v{S0+r}, v{S0+r}, v{M}")
    for r in range(16): a(f"v_exp_f32 v{E+r}, v{S0+r}")
    a("s_nop 0")
    for r in range(8): a(f"v_cvt_pk_bf16_f32 v{P0+r}, v{E+2*r}, v{E+2*r+1}")
    a(f"""
    s_nop 1
    v_mfma_f32_32x32x16_bf16 {vr(OF,16)}, {ar(8,4)}, {vr(P0,4)}, {vr(OF,16)}
    v_mfma_f32_32x32x16_bf16 {vr(OF,16)}, {ar(12,4)}, {vr(P0+4,4)}, {vr(OF,16)}
    s_add_u32 s58, s58, 4096
    s_add_u32 s59, s59, 1
    s_cmp_lt_u32 s59, 64
    s_cbranch_scc1 L_slow2
    s_nop 15
    v_mov_b32 v{T0}, v{OF+12}
    v_mov_b32 v{T0+1}, v{OF+12}
    s_nop 1
    v_permlane32_swap_b32 v{T0}, v{T0+1}
    s_nop 1
    v_rcp_f32 v{T0+2}, v{T0+1}
    s_cmp_lg_u32 s{sG}, 0
    s_cbranch_scc1 L_slow3
    """)
    for r in range(8): a(f"v_mov_b32 v{H+r}, v{OF+r}")
    a("s_branch L_store")
    a.label("L_slow3")
    for r in range(8): a(f"v_mov_b32 v{H+r}, v{OF+8+r}")
    a("s_branch L_store")
    a.label("L_end")
    a("s_endpgm")
    return a.text(), kernel_desc(name, 256, 128, 72), f"; @launch grid=(256,1,1) block=(512,1,1) lds={LDS_TOTAL}"

HDR = """; Kernarg layout for this problem (48 bytes, ptrs only, base s[0:1]):
;
; placement-independent hand-offs through d_ws (sc1 stores -> vmcnt(0) -> sc1 flag; sc1 polls/loads):
;  A  QKV projection, 64x128 tiles (LDS-DMA ring, waves 4-7 load, waves 0-3 MFMA); K/V tiles do a second
"""
def write(part, out):
    s = HDR + part[2] + "\n" + '.amdgcn_target "amdgcn-amd-amdhsa--gfx950"\n.text\n' + part[0] + '.section .rodata,"a"\n' + part[1]
    open(out, "w").write(s)
if __name__ == "__main__":
    import sys
    from stamp2 import instrument
    p = gen()
    tag = sys.argv[1] if len(sys.argv) > 1 else "fused"
    write(p, f"var/{tag}.s")
    write(instrument(p, 0), f"var/{tag}_st.s")
```
